```python
import torch

def _softmax(x, axis=-1):
    return torch.softmax(x, dim=axis)
def _gelu(x):
    return torch.nn.functional.gelu(x, approximate="tanh")
def _silu(x):
    return torch.nn.functional.silu(x)
def _sigmoid(x):
    return torch.sigmoid(x)
def _layernorm(x, axis=-1, eps=1e-5):
    m = x.mean(dim=axis, keepdim=True)
    v = x.var(dim=axis, keepdim=True, unbiased=False)
    return (x - m) / torch.sqrt(v + eps)
def _scatter_add(tgt, idx, src, axis=0):
    return tgt.clone().index_add_(axis, idx, src)
def _segment_sum(src, seg, n):
    out = torch.zeros((n,) + src.shape[1:], dtype=src.dtype)
    return out.index_add_(0, seg, src)
def _pad(x, pw):
    flat = tuple(v for pair in reversed(pw) for v in pair)
    return torch.nn.functional.pad(x, flat)

kernel_name = 'recurrent_scan__sliding_block_cached__dense_activation_gelu__decode'

def setup_inputs():

    _w = (lambda a: (lambda t: t.to(torch.bfloat16) if t.is_floating_point() else t)(torch.as_tensor(a)))
    def _A_setup():
        B, Sq, D = 8, 1, 512
        Hq, Hkv, Sk, Dh = 32, 8, 4096, 128
        assert Hq % Hkv == 0, (Hq, Hkv)
        return {
            "x": _w((lambda *s: torch.randn(*s, dtype=torch.bfloat16) * 0.05)(B, Sq, D)),
            "k_cache": _w((lambda *s: torch.randn(*s, dtype=torch.bfloat16) * 3.2)(B, Hkv, Sk, Dh)),
            "v_cache": _w((lambda *s: torch.randn(*s, dtype=torch.bfloat16) * 3.2)(B, Hkv, Sk, Dh)),
            "wq": _w((lambda *s: torch.randn(*s, dtype=torch.bfloat16) * 3.2)(D, Hq * Dh) * (D ** -0.5)),
            "wo": _w((lambda *s: torch.randn(*s, dtype=torch.bfloat16) * 3.2)(Hq * Dh, D) * ((Hq * Dh) ** -0.5)),
        }
    _A_in = _A_setup()

    def _B_setup():
        B, S, D, F = 8, 1, 512, 1792
        return {
            "x": _w((lambda *s: torch.randn(*s, dtype=torch.bfloat16) * 0.05)(B, S, D)),
            "w1": _w((lambda *s: torch.randn(*s, dtype=torch.bfloat16) * 3.2)(D, F) * (D ** -0.5)),
            "b1": _w((lambda *s: torch.randn(*s, dtype=torch.bfloat16) * 3.2)(F) * 0.01),
            "w2": _w((lambda *s: torch.randn(*s, dtype=torch.bfloat16) * 0.4)(F, D) * (F ** -0.5)),
            "b2": _w((lambda *s: torch.randn(*s, dtype=torch.bfloat16) * 0.4)(D) * 0.01),
        }
    _B_in = _B_setup()

    return {
        "A_x": _A_in["x"],
        "A_k_cache": _A_in["k_cache"],
        "A_v_cache": _A_in["v_cache"],
        "A_wq": _A_in["wq"],
        "A_wo": _A_in["wo"],
        "B_x": _B_in["x"],
        "B_w1": _B_in["w1"],
        "B_b1": _B_in["b1"],
        "B_w2": _B_in["w2"],
        "B_b2": _B_in["b2"],
    }

def reference(A_x, A_k_cache, A_v_cache, A_wq, A_wo, B_x, B_w1, B_b1, B_w2, B_b2):
    def _A_ref(x, k_cache, v_cache, wq, wo):
        B, Sq, D = x.shape
        Hq, Dh = 32, 128
        Hkv, Sk = k_cache.shape[1], k_cache.shape[2]
        W = min(4096, max(256, Sk // 4))
        rep = Hq // Hkv
        q = (lambda x, *d: x.permute(*d))((x @ wq).reshape(B, Sq, Hq, Dh), 0, 2, 1, 3)
        k = (lambda x, n, axis: torch.repeat_interleave(x, n, dim=axis))(k_cache[:, :, Sk - W:, :], rep, axis=1)
        v = (lambda x, n, axis: torch.repeat_interleave(x, n, dim=axis))(v_cache[:, :, Sk - W:, :], rep, axis=1)
        scores = torch.einsum("bhqd,bhkd->bhqk", q, k) * (Dh ** -0.5)
        p = _softmax(scores, axis=-1)
        o = torch.einsum("bhqk,bhkd->bhqd", p, v)
        return (lambda x, *d: x.permute(*d))(o, 0, 2, 1, 3).reshape(B, Sq, Hq * Dh) @ wo

    def _B_ref(x, w1, b1, w2, b2):
        h = torch.einsum("bsd,df->bsf", x, w1) + b1
        h = _gelu(h)
        return torch.einsum("bsf,fd->bsd", h, w2) + b2

    x = A_x
    xn = _layernorm(x, axis=-1)
    s = _A_ref(xn, A_k_cache, A_v_cache, A_wq, A_wo)
    g = _silu(_B_ref(xn, B_w1, B_b1, B_w2, B_b2))
    return x + s * g
```

```python
import sys
NAME = "recurrent_scan__sliding_block_cached__dense_activation_gelu__decode"
STAMPS = "--stamps" in sys.argv
L = []
def A(s): L.append("    " + s)
def LB(s): L.append(s + ":")
def C(s): L.append("    ; " + s)

LK = 0; LWQ = 65536; LW1 = 81920; LWO = 98304; LW2 = 114688; LXN = 122880; XNP = 1040
LQ = 131328; LH = 132352; HPITCH = 144; LO = 133504; LMX = 134656; LLS = 134784; LWT = 134912
LORED = 65536
LDS_TOTAL = 135168
WQP = 0x0; WHP = 0x80000; WOB = 0x100000; WST = 0x180000; WSB = 0x200000; WYB = 0x300000; WTM = 0x400000
EMPTY = 0xFFFFFFFF
SPIN = 200000

def nop(n): A(f"s_nop {n-1}") if n > 0 else None

_stamp = [0]
def stamp(cond_wave0=True):
    if not STAMPS: return
    k = _stamp[0]; _stamp[0] += 1
    A("s_memrealtime s[98:99]")
    A("s_waitcnt lgkmcnt(0)")
    A("v_mov_b32 v160, s98"); A("v_mov_b32 v161, s99")
    A(f"s_lshl_b32 s97, s2, 8"); A(f"s_add_u32 s97, s97, {WTM + 8*k}")
    A("v_mov_b32 v162, s97")
    A("global_store_dwordx2 v162, v[160:161], s[88:89]")

def srd(d, p, n):
    A(f"s_mov_b32 s{d}, s{p}"); A(f"s_mov_b32 s{d+1}, s{p+1}"); A(f"s_mov_b32 s{d+2}, {hex(n)}"); A(f"s_mov_b32 s{d+3}, 0x20000")

def dpp_add(v, ctrl, op="v_add_f32"):
    nop(2)
    bc = " bound_ctrl:0" if "shr" in ctrl else ""
    A(f"{op}_dpp v{v}, v{v}, v{v} {ctrl} row_mask:0xf bank_mask:0xf{bc}")

def allred32(v, t, op="v_add_f32"):
    dpp_add(v, "quad_perm:[1,0,3,2]", op); dpp_add(v, "quad_perm:[2,3,0,1]", op)
    dpp_add(v, "row_half_mirror", op); dpp_add(v, "row_mirror", op)
    A(f"v_mov_b32 v{t}, v{v}"); nop(2)
    A(f"v_permlane16_swap_b32 v{v}, v{t}"); nop(1)
    A(f"{op} v{v}, v{v}, v{t}")

def red_g(v, t, op):
    A(f"v_mov_b32 v{t}, v{v}"); nop(2)
    A(f"v_permlane16_swap_b32 v{v}, v{t}"); nop(1)
    A(f"{op} v{v}, v{v}, v{t}")
    A(f"v_mov_b32 v{t}, v{v}"); nop(2)
    A(f"v_permlane32_swap_b32 v{v}, v{t}"); nop(1)
    A(f"{op} v{v}, v{v}, v{t}")

def rnd1(v, t=None):
    A(f"v_cvt_pk_bf16_f32 v{v}, v{v}, v{v}")
    A(f"v_lshlrev_b32 v{v}, 16, v{v}")

def guard(v):
    A(f"v_cmp_eq_u32 vcc, -1, v{v}"); nop(2)
    A(f"v_cndmask_b32 v{v}, v{v}, v159, vcc")

def spin_head(lbl):
    A("s_mov_b32 s96, 0"); LB(lbl)
def spin_tail(lbl, done):
    A(f"s_cbranch_vccz {done}")
    A("s_add_u32 s96, s96, 1"); A(f"s_cmp_lt_u32 s96, {SPIN}"); A(f"s_cbranch_scc1 {lbl}")
    LB(done)

L.append(f"; @launch grid=(256,1,1) block=(768,1,1) lds={LDS_TOTAL}")
L.append('.amdgcn_target "amdgcn-amd-amdhsa--gfx950"')
L.append(".text")
L.append(f".globl {NAME}_kernel"); L.append(".p2align 8"); L.append(f".type {NAME}_kernel,@function")
LB(f"{NAME}_kernel")
A("s_cmp_ge_u32 s2, 256"); A("s_cbranch_scc1 L_end")
A("s_load_dwordx16 s[64:79], s[0:1], 0")
A("s_load_dwordx8 s[80:87], s[0:1], 64")
A("s_load_dwordx2 s[88:89], s[0:1], 96")
A("s_and_b32 s20, s2, 7"); A("s_lshr_b32 s21, s2, 3"); A("s_lshr_b32 s22, s21, 2"); A("s_and_b32 s23, s21, 3")
A("v_lshrrev_b32 v1, 6, v0"); A("v_and_b32 v2, 63, v0")
A("v_mov_b32 v159, 0x7fc00000")
A("v_readfirstlane_b32 s30, v1")
A("s_lshl_b32 s24, s22, 3"); A("s_add_u32 s24, s24, s20"); A("s_lshl_b32 s24, s24, 20"); A("s_add_u32 s24, s24, 0xC0000")
A("s_lshl_b32 s25, s23, 16"); A("s_add_u32 s25, s25, s24")
A("v_and_b32 v3, 15, v2"); A("v_lshrrev_b32 v4, 4, v2")
A("s_waitcnt lgkmcnt(0)")
A("s_cmp_ge_u32 s30, 8"); A("s_cbranch_scc1 L_ctrl")

C("bulk waves")
srd(8, 66, 0x4000000); srd(12, 68, 0x4000000); srd(44, 72, 0x400000); srd(52, 80, 512*1792*2)
A("s_lshl_b32 s31, s30, 13")
A("s_add_u32 s26, s31, s25")
for nn in range(4):
    A(f"v_add_u32 v5, {4*nn}, v4"); A("v_xor_b32 v5, v5, v3"); A("v_lshlrev_b32 v5, 4, v5"); A(f"v_lshl_add_u32 v{6+nn}, v4, 8, v5")
A("s_mov_b32 m0, s31"); nop(1)
for nn in range(4):
    A(f"buffer_load_dwordx4 v{6+nn}, s[8:11], s26 offen offset:{nn*1024} nt lds")
A("s_add_u32 m0, s31, 4096"); A("s_add_u32 s27, s26, 4096")
for nn in range(4):
    A(f"buffer_load_dwordx4 v{6+nn}, s[8:11], s27 offen offset:{nn*1024} nt lds")
A("v_lshrrev_b32 v10, 3, v2"); A("v_lshlrev_b32 v10, 10, v10"); A("v_and_b32 v11, 7, v2"); A("v_lshl_add_u32 v10, v11, 4, v10")
A("s_mul_i32 s32, s21, 56"); A("s_lshl_b32 s33, s30, 3"); A("s_add_u32 s32, s32, s33"); A("s_lshl_b32 s32, s32, 10")
A("s_lshl_b32 s33, s20, 7"); A("s_add_u32 s32, s32, s33")
A("s_lshl_b32 s33, s30, 10"); A(f"s_add_u32 s33, s33, {LW2}")
A("s_cmp_eq_u32 s30, 7"); A("s_cbranch_scc1 L_w2zero")
A("s_mov_b32 m0, s33"); nop(1)
A("buffer_load_dwordx4 v10, s[52:55], s32 offen nt lds")
A("s_branch L_w2done")
LB("L_w2zero")
A("v_mov_b32 v12, 0"); A("v_mov_b32 v13, 0"); A("v_mov_b32 v14, 0"); A("v_mov_b32 v15, 0")
A(f"v_lshlrev_b32 v11, 4, v2"); A(f"v_add_u32 v11, {LW2 + 7168}, v11")
A("ds_write_b128 v11, v[12:15]")
A("buffer_load_dwordx4 v[12:15], v10, s[52:55], 0 offen")
LB("L_w2done")
A("v_lshlrev_b32 v5, 4, v2"); A("v_add_u32 v5, s31, v5"); A("v_add_u32 v6, 4096, v5")
for n in range(8):
    A(f"buffer_load_dwordx4 v[{16+4*n}:{19+4*n}], v{5 if n<4 else 6}, s[12:15], s25 offen offset:{(n%4)*1024} nt")
A("v_lshlrev_b32 v7, 10, v4"); A("v_lshl_add_u32 v7, v3, 4, v7")
A("s_lshl_b32 s32, s20, 9"); A("s_lshl_b32 s33, s22, 6"); A("s_add_u32 s32, s32, s33"); A("s_lshl_b32 s33, s30, 3"); A("s_add_u32 s32, s32, s33")
A("s_lshl_b32 s32, s32, 10"); A("s_lshl_b32 s33, s23, 8"); A("s_add_u32 s32, s32, s33")
A("s_lshl_b32 s33, s30, 11"); A(f"s_add_u32 s33, s33, {LWO}")
A("s_mov_b32 m0, s33"); nop(1)
A("buffer_load_dwordx4 v7, s[44:47], s32 offen nt lds")
A("s_add_u32 m0, s33, 1024"); A("s_add_u32 s32, s32, 4096")
A("buffer_load_dwordx4 v7, s[44:47], s32 offen nt lds")
A("s_barrier")
A("s_barrier")
A("s_barrier")
A("s_waitcnt vmcnt(10) lgkmcnt(0)")
A("s_barrier")
C("S phase")
A("v_and_b32 v5, 3, v3"); A("v_lshlrev_b32 v5, 2, v5"); A("v_lshrrev_b32 v6, 2, v3"); A("v_or_b32 v5, v5, v6")
A("v_lshlrev_b32 v6, 8, v5"); A("v_add_u32 v6, s31, v6")
for s in range(4):
    A(f"v_add_u32 v7, {4*s}, v4"); A("v_xor_b32 v7, v7, v5"); A(f"v_lshl_add_u32 v{8+s}, v7, 4, v6")
for t in range(2):
    for s in range(4):
        A(f"ds_read_b128 v[{48+16*t+4*s}:{51+16*t+4*s}], v{8+s} offset:{t*4096}")
A("v_lshrrev_b32 v7, 3, v3"); A("v_lshlrev_b32 v7, 8, v7"); A(f"v_lshl_add_u32 v7, v4, 4, v7"); A(f"v_add_u32 v7, {LQ}, v7")
for hp in range(2):
    for s in range(4):
        A(f"ds_read_b128 v[{80+16*hp+4*s}:{83+16*hp+4*s}], v7 offset:{hp*512+s*64}")
for i in range(16): A(f"v_mov_b32 v{112+i}, 0")
A("v_and_b32 v8, 7, v3"); A("v_and_b32 v9, 1, v8"); A("v_lshrrev_b32 v10, 1, v8")
A("v_mov_b32 v11, 0xffff"); A("v_mov_b32 v12, 0xffff0000")
A("v_cmp_eq_u32 vcc, 1, v9"); nop(2); A("v_cndmask_b32 v11, v11, v12, vcc")
for r in range(4):
    A(f"v_cmp_eq_u32 vcc, {r}, v10"); nop(2); A(f"v_cndmask_b32 v{128+r}, 0, v11, vcc")
A("s_waitcnt lgkmcnt(0)")
for s in range(4):
    for hp in range(2):
        for t in range(2):
            a = 112 + 8*hp + 4*t
            A(f"v_mfma_f32_16x16x32_bf16 v[{a}:{a+3}], v[{48+16*t+4*s}:{51+16*t+4*s}], v[{80+16*hp+4*s}:{83+16*hp+4*s}], v[{a}:{a+3}]")
nop(8); nop(2)
A("s_mov_b32 s34, 0x3db504f3")
for i in range(0, 16, 2):
    a, b = 112+i, 113+i
    A(f"v_cvt_pk_bf16_f32 v8, v{a}, v{b}")
    A(f"v_lshlrev_b32 v{a}, 16, v8"); A(f"v_and_b32 v{b}, 0xffff0000, v8")
    A(f"v_mul_f32 v{a}, s34, v{a}"); A(f"v_mul_f32 v{b}, s34, v{b}")
    A(f"v_cvt_pk_bf16_f32 v8, v{a}, v{b}")
    A(f"v_lshlrev_b32 v{a}, 16, v8"); A(f"v_and_b32 v{b}, 0xffff0000, v8")
for hp in range(2):
    a = 112 + 8*hp
    A(f"v_max3_f32 v{132+hp}, v{a}, v{a+1}, v{a+2}"); A(f"v_max3_f32 v{132+hp}, v{132+hp}, v{a+3}, v{a+4}")
    A(f"v_max3_f32 v{132+hp}, v{132+hp}, v{a+5}, v{a+6}"); A(f"v_max_f32 v{132+hp}, v{132+hp}, v{a+7}")
    red_g(132+hp, 8, "v_max_f32")
A("v_lshrrev_b32 v7, 3, v3"); A("v_lshlrev_b32 v7, 5, v7")
A("s_lshl_b32 s33, s30, 2"); A(f"s_add_u32 s33, s33, {LMX}"); A("v_add_u32 v9, s33, v7")
A("ds_write_b32 v9, v132"); A("ds_write_b32 v9, v133 offset:64")
A("s_waitcnt lgkmcnt(0)")
A("s_barrier")
A(f"v_add_u32 v9, {LMX}, v7")
A("ds_read_b128 v[48:51], v9"); A("ds_read_b128 v[52:55], v9 offset:16")
A("ds_read_b128 v[56:59], v9 offset:64"); A("ds_read_b128 v[60:63], v9 offset:80")
A("s_waitcnt lgkmcnt(0)")
for hp in range(2):
    a = 48 + 8*hp
    A(f"v_max3_f32 v{132+hp}, v{a}, v{a+1}, v{a+2}"); A(f"v_max3_f32 v{132+hp}, v{132+hp}, v{a+3}, v{a+4}")
    A(f"v_max3_f32 v{132+hp}, v{132+hp}, v{a+5}, v{a+6}"); A(f"v_max_f32 v{132+hp}, v{132+hp}, v{a+7}")
A("s_mov_b32 s34, 0x3fb8aa3b")
for hp in range(2):
    for i in range(8):
        a = 112 + 8*hp + i
        A(f"v_sub_f32 v{a}, v{a}, v{132+hp}"); A(f"v_mul_f32 v{a}, s34, v{a}"); A(f"v_exp_f32 v{a}, v{a}")
nop(1)
for hp in range(2):
    a = 112 + 8*hp
    A(f"v_add_f32 v{134+hp}, v{a}, v{a+1}")
    for i in range(2, 8): A(f"v_add_f32 v{134+hp}, v{134+hp}, v{a+i}")
    red_g(134+hp, 8, "v_add_f32")
A("s_lshl_b32 s33, s30, 2"); A(f"s_add_u32 s33, s33, {LLS}"); A("v_add_u32 v9, s33, v7")
A("ds_write_b32 v9, v134"); A("ds_write_b32 v9, v135 offset:64")
for t in range(2):
    for r in range(4):
        i = 4*t + r
        for hp in range(2):
            src = 112 + 8*hp + 4*t + r
            d = 48 + (i*2+hp)*4
            A(f"v_cvt_pk_bf16_f32 v8, v{src}, v{src}")
            for q in range(4): A(f"v_and_b32 v{d+q}, v8, v{128+q}")
for i in range(8): A(f"v_mov_b32 v{132+i}, 0")
A("s_waitcnt lgkmcnt(0)")
A("s_barrier")
C("PV")
for i in range(8):
    A(f"s_waitcnt vmcnt({7-i+2})")
    for hp in range(2):
        d = 48 + (i*2+hp)*4
        A(f"v_mfma_f32_16x16x32_bf16 v[{132+4*hp}:{135+4*hp}], v[{16+4*i}:{19+4*i}], v[{d}:{d+3}], v[{132+4*hp}:{135+4*hp}]")
A("s_lshl_b32 s33, s30, 11"); A(f"s_add_u32 s33, s33, {LORED}"); A("v_lshlrev_b32 v9, 4, v2"); A("v_add_u32 v9, s33, v9")
nop(8)
A("ds_write_b128 v9, v[132:135]"); A("ds_write_b128 v9, v[136:139] offset:1024")
A("s_waitcnt vmcnt(0) lgkmcnt(0)")
A("s_barrier")
A(f"v_lshlrev_b32 v9, 2, v0"); A(f"v_add_u32 v9, {LORED}, v9")
for w in range(8): A(f"ds_read_b32 v{48+w}, v9 offset:{w*2048}")
A("v_lshrrev_b32 v10, 2, v3"); A("v_lshl_add_u32 v10, v4, 3, v10"); A("v_lshlrev_b32 v10, 8, v10")
A("v_and_b32 v11, 3, v3"); A("v_lshl_add_u32 v10, v11, 3, v10")
A("s_lshl_b32 s33, s30, 5"); A(f"s_add_u32 s33, s33, {LWO}"); A("v_add_u32 v10, s33, v10")
for s in range(2):
    A(f"ds_read_b64_tr_b16 v[{140+4*s}:{141+4*s}], v10 offset:{s*8192}")
    A(f"ds_read_b64_tr_b16 v[{142+4*s}:{143+4*s}], v10 offset:{s*8192+1024}")
A("v_lshrrev_b32 v11, 8, v0"); A("v_lshrrev_b32 v12, 2, v0"); A("v_and_b32 v12, 63, v12")
A("v_and_b32 v13, 15, v12"); A("v_lshrrev_b32 v14, 4, v12"); A("v_and_b32 v15, 3, v0")
A("v_lshrrev_b32 v5, 3, v13"); A("v_lshl_add_u32 v5, v11, 1, v5")
A("v_lshlrev_b32 v5, 7, v5"); A("v_lshl_add_u32 v5, v14, 5, v5"); A("v_lshl_add_u32 v5, v15, 3, v5")
A("v_and_b32 v13, 7, v13"); A("v_add_u32 v5, v5, v13"); A("v_lshlrev_b32 v5, 2, v5")
A(f"s_lshl_b32 s33, s2, 11"); A(f"s_add_u32 s33, s33, {WOB}"); A("v_add_u32 v5, s33, v5")
A("s_waitcnt lgkmcnt(4)")
A("v_add_f32 v48, v48, v49"); A("v_add_f32 v50, v50, v51"); A("v_add_f32 v52, v52, v53"); A("v_add_f32 v54, v54, v55")
A("v_add_f32 v48, v48, v50"); A("v_add_f32 v52, v52, v54"); A("v_add_f32 v48, v48, v52")
guard(48)
A("global_store_dword v5, v48, s[88:89] sc1")
C("combine: wave w = b', lane = k (0..63); sources c'=0..3 : id' = hkv + 8*(4b'+c')")
A("s_lshl_b32 s33, s30, 2"); A("s_lshl_b32 s33, s33, 3"); A("s_add_u32 s33, s33, s20"); A("s_lshl_b32 s33, s33, 11")
A("s_lshl_b32 s34, s22, 8"); A("s_add_u32 s33, s33, s34"); A(f"s_add_u32 s33, s33, {WOB}")
A("v_lshlrev_b32 v5, 2, v2"); A("v_add_u32 v5, s33, v5")
A("v_add_u32 v7, 0x8000, v5")
A("s_lshl_b32 s33, s30, 4"); A(f"s_add_u32 s33, s33, {LWT}"); A("v_mov_b32 v6, s33")
A("ds_read_b128 v[52:55], v6")
spin_head("L_po")
A("global_load_dword v48, v5, s[88:89] sc1")
A("global_load_dword v49, v5, s[88:89] offset:2048 sc1") if False else None
A("v_add_u32 v8, 0x4000, v5")
A("global_load_dword v49, v8, s[88:89] sc1")
A("global_load_dword v50, v7, s[88:89] sc1")
A("v_add_u32 v8, 0xc000, v5")
A("global_load_dword v51, v8, s[88:89] sc1")
A("s_waitcnt vmcnt(0)")
A("v_cmp_eq_u32 vcc, -1, v48"); A("v_cmp_eq_u32 s[36:37], -1, v49"); A("s_or_b64 s[38:39], vcc, s[36:37]")
A("v_cmp_eq_u32 vcc, -1, v50"); A("v_cmp_eq_u32 s[36:37], -1, v51"); A("s_or_b64 s[38:39], s[38:39], vcc"); A("s_or_b64 vcc, s[38:39], s[36:37]")
spin_tail("L_po", "L_po_done")
A("s_waitcnt lgkmcnt(0)")
A("v_mul_f32 v48, v48, v52"); A("v_fmac_f32 v48, v49, v53"); A("v_fmac_f32 v48, v50, v54"); A("v_fmac_f32 v48, v51, v55")
A("v_cvt_pk_bf16_f32 v48, v48, v48")
A(f"s_mul_i32 s33, s30, {HPITCH}"); A(f"s_add_u32 s33, s33, {LO}"); A("v_lshlrev_b32 v6, 1, v2"); A("v_add_u32 v6, s33, v6")
A("ds_write_b16 v6, v48")
A("s_waitcnt lgkmcnt(0)")
A("s_barrier")
A("v_and_b32 v6, 7, v3"); A(f"v_mul_u32_u24 v6, {HPITCH}, v6"); A("v_lshl_add_u32 v6, v4, 4, v6"); A(f"v_add_u32 v6, {LO}, v6")
A("ds_read_b128 v[48:51], v6"); A("ds_read_b128 v[52:55], v6 offset:64")
for i in range(4): A(f"v_mov_b32 v{56+i}, 0")
A("v_lshlrev_b32 v5, 11, v4"); A("v_lshl_add_u32 v5, v3, 2, v5")
A("s_lshl_b32 s33, s2, 12"); A("s_lshl_b32 s34, s30, 6"); A("s_add_u32 s33, s33, s34"); A(f"s_add_u32 s33, s33, {WSB}"); A("v_add_u32 v5, s33, v5")
A("s_waitcnt lgkmcnt(0)")
A("v_mfma_f32_16x16x32_bf16 v[56:59], v[48:51], v[140:143], v[56:59]")
A("v_mfma_f32_16x16x32_bf16 v[56:59], v[52:55], v[144:147], v[56:59]")
nop(8); nop(2)
for r in range(4): guard(56+r)
A("v_cmp_gt_u32 vcc, 32, v2"); A("s_and_saveexec_b64 s[36:37], vcc")
for r in range(4): A(f"global_store_dword v5, v{56+r}, s[88:89] offset:{r*512} sc1")
A("s_endpgm")

LB("L_ctrl")
C("control waves")
A("s_sub_u32 s31, s30, 8")
srd(40, 70, 0x400000); srd(48, 76, 512*1792*2)
A("v_lshrrev_b32 v5, 5, v2"); A("v_and_b32 v6, 31, v2")
A("s_lshl_b32 s32, s31, 1"); A("v_add_u32 v7, s32, v5")
A("v_lshlrev_b32 v8, 10, v7"); A("v_lshl_add_u32 v8, v6, 5, v8")
A("global_load_dwordx4 v[40:43], v8, s[64:65]"); A("global_load_dwordx4 v[44:47], v8, s[64:65] offset:16")
A("s_lshr_b32 s26, s21, 3"); A("s_and_b32 s27, s21, 7"); A("s_lshl_b32 s28, s20, 3"); A("s_add_u32 s27, s27, s28")
A("v_lshrrev_b32 v9, 3, v2"); A("v_and_b32 v10, 7, v2"); A("v_lshlrev_b32 v11, 13, v9"); A("v_lshl_add_u32 v11, v10, 4, v11")
A("s_lshl_b32 s32, s26, 7"); A("s_lshl_b32 s33, s31, 5"); A("s_add_u32 s32, s32, s33"); A("s_lshl_b32 s32, s32, 13")
A("s_lshl_b32 s33, s27, 7"); A("s_add_u32 s32, s32, s33")
A("s_lshl_b32 s34, s31, 12"); A(f"s_add_u32 s35, s34, {LWQ}")
for n in range(4):
    A(f"s_add_u32 m0, s35, {n*1024}"); A(f"s_add_u32 s33, s32, {n*8*8192}")
    A("buffer_load_dwordx4 v11, s[40:43], s33 offen nt lds")
A("s_mul_i32 s28, s20, 14"); A("s_add_u32 s28, s28, s21"); A("s_lshr_b32 s29, s28, 2"); A("s_and_b32 s28, s28, 3")
A("s_cmp_ge_u32 s21, 14"); A("s_cbranch_scc1 L_now1")
A("v_mul_u32_u24 v11, 3584, v9"); A("v_lshl_add_u32 v11, v10, 4, v11")
A("s_lshl_b32 s32, s28, 7"); A("s_lshl_b32 s33, s31, 5"); A("s_add_u32 s32, s32, s33"); A("s_mul_i32 s32, s32, 3584")
A("s_lshl_b32 s33, s29, 7"); A("s_add_u32 s32, s32, s33")
A(f"s_add_u32 s35, s34, {LW1}")
for n in range(4):
    A(f"s_add_u32 m0, s35, {n*1024}"); A(f"s_add_u32 s33, s32, {n*8*3584}")
    A("buffer_load_dwordx4 v11, s[48:51], s33 offen nt lds")
LB("L_now1")
for i in range(4): A(f"v_mov_b32 v{12+i}, -1")
A("v_lshlrev_b32 v16, 4, v2")
A("s_cmp_eq_u32 s31, 0"); A("s_cbranch_scc0 L_cl1")
A(f"s_lshl_b32 s32, s2, 11"); A(f"s_add_u32 s32, s32, {WOB}"); A("v_add_u32 v17, s32, v16")
A("global_store_dwordx4 v17, v[12:15], s[88:89] sc1"); A("global_store_dwordx4 v17, v[12:15], s[88:89] offset:1024 sc1")
A(f"s_lshl_b32 s32, s2, 6"); A(f"s_add_u32 s32, s32, {WST}"); A("v_lshlrev_b32 v17, 2, v2"); A("v_add_u32 v17, s32, v17")
A("v_cmp_gt_u32 vcc, 16, v2"); A("s_and_saveexec_b64 s[36:37], vcc"); A("global_store_dword v17, v12, s[88:89] sc1"); A("s_mov_b64 exec, s[36:37]")
A("s_branch L_cldone")
LB("L_cl1")
A("s_cmp_eq_u32 s31, 3"); A("s_cbranch_scc1 L_cl3")
A(f"s_lshl_b32 s32, s2, 12"); A("s_sub_u32 s33, s31, 1"); A("s_lshl_b32 s33, s33, 11"); A("s_add_u32 s32, s32, s33"); A(f"s_add_u32 s32, s32, {WSB}"); A("v_add_u32 v17, s32, v16")
A("global_store_dwordx4 v17, v[12:15], s[88:89] sc1"); A("global_store_dwordx4 v17, v[12:15], s[88:89] offset:1024 sc1")
A("s_branch L_cldone")
LB("L_cl3")
A(f"s_lshl_b32 s32, s2, 11"); A(f"s_add_u32 s32, s32, {WYB}"); A("v_add_u32 v17, s32, v16")
A("global_store_dwordx4 v17, v[12:15], s[88:89] sc1"); A("global_store_dwordx4 v17, v[12:15], s[88:89] offset:1024 sc1")
LB("L_cldone")
C("LN")
A("s_waitcnt vmcnt(0)")
for i in range(8):
    A(f"v_lshlrev_b32 v{16+2*i}, 16, v{40+i}"); A(f"v_and_b32 v{17+2*i}, 0xffff0000, v{40+i}")
A("v_add_f32 v32, v16, v17")
for i in range(2, 16): A(f"v_add_f32 v32, v32, v{16+i}")
allred32(32, 33)
A("v_mul_f32 v32, 0x3b000000, v32")
A("v_sub_f32 v34, v16, v32"); A("v_mul_f32 v33, v34, v34")
for i in range(1, 16):
    A(f"v_sub_f32 v34, v{16+i}, v32"); A("v_fmac_f32 v33, v34, v34")
allred32(33, 34)
A("v_mul_f32 v33, 0x3b000000, v33")
rnd1(32); rnd1(33)
A("v_add_f32 v33, 0x3727c5ac, v33"); rnd1(33)
A("v_sqrt_f32 v33, v33"); nop(1); rnd1(33)
A("v_rcp_f32 v33, v33"); nop(1)
for i in range(0, 16, 2):
    a, b = 16+i, 17+i
    A(f"v_sub_f32 v{a}, v{a}, v32"); A(f"v_sub_f32 v{b}, v{b}, v32")
    A(f"v_cvt_pk_bf16_f32 v34, v{a}, v{b}")
    A(f"v_lshlrev_b32 v{a}, 16, v34"); A(f"v_and_b32 v{b}, 0xffff0000, v34")
    A(f"v_mul_f32 v{a}, v{a}, v33"); A(f"v_mul_f32 v{b}, v{b}, v33")
    A(f"v_cvt_pk_bf16_f32 v{40+i//2}, v{a}, v{b}")
A(f"v_mul_u32_u24 v8, {XNP}, v7"); A("v_lshl_add_u32 v8, v6, 5, v8"); A(f"v_add_u32 v8, {LXN}, v8")
A("ds_write_b128 v8, v[40:43]"); A("ds_write_b128 v8, v[44:47] offset:16")
A("s_waitcnt lgkmcnt(0)")
A("s_barrier")
C("jobs")
def job(lw, skg, wsbase, rowpitch, scg, lbl):
    A("v_and_b32 v5, 7, v3"); A(f"v_mul_u32_u24 v5, {XNP}, v5"); A("v_lshl_add_u32 v5, v4, 4, v5")
    A(f"s_lshl_b32 s32, s{skg}, 8"); A(f"s_add_u32 s32, s32, {LXN}"); A("v_add_u32 v5, s32, v5")
    for s in range(4): A(f"ds_read_b128 v[{16+4*s}:{19+4*s}], v5 offset:{s*64}")
    A("v_lshrrev_b32 v6, 2, v3"); A("v_lshl_add_u32 v6, v4, 3, v6"); A("v_lshlrev_b32 v6, 7, v6")
    A("v_and_b32 v7, 3, v3"); A("v_lshl_add_u32 v6, v7, 3, v6")
    A("s_lshl_b32 s32, s31, 5"); A(f"s_add_u32 s32, s32, {lw}"); A("v_add_u32 v6, s32, v6")
    for s in range(4):
        A(f"ds_read_b64_tr_b16 v[{32+4*s}:{33+4*s}], v6 offset:{s*4096}")
        A(f"ds_read_b64_tr_b16 v[{34+4*s}:{35+4*s}], v6 offset:{s*4096+512}")
    for i in range(4): A(f"v_mov_b32 v{48+i}, 0")
    A(f"v_mul_u32_u24 v7, {4*rowpitch}, v4"); A("v_lshl_add_u32 v7, v3, 2, v7")
    A(f"s_mul_i32 s32, s{skg}, {8*rowpitch}"); A(f"s_lshl_b32 s33, s{scg}, 8"); A("s_add_u32 s32, s32, s33"); A("s_lshl_b32 s33, s31, 6"); A("s_add_u32 s32, s32, s33")
    A(f"s_add_u32 s32, s32, {wsbase}"); A("v_add_u32 v7, s32, v7")
    A("s_waitcnt lgkmcnt(0)")
    for s in range(4):
        A(f"v_mfma_f32_16x16x32_bf16 v[48:51], v[{16+4*s}:{19+4*s}], v[{32+4*s}:{35+4*s}], v[48:51]")
    nop(8); nop(2)
    A("v_cmp_gt_u32 vcc, 32, v2"); A("s_and_saveexec_b64 s[36:37], vcc")
    for r in range(4):
        A(f"v_add_u32 v8, {r*rowpitch}, v7"); A(f"global_store_dword v8, v{48+r}, s[88:89] sc1")
    A("s_mov_b64 exec, s[36:37]")
job(LWQ, 26, WQP, 16384, 27, "q")
A("s_cmp_ge_u32 s21, 14"); A("s_cbranch_scc1 L_noh")
job(LW1, 28, WHP, 7168, 29, "h")
LB("L_noh")
A("s_waitcnt vmcnt(0)")
A("s_barrier")
A("s_cmp_lg_u32 s31, 0"); A("s_cbranch_scc1 L_c_wait")
A("v_mov_b32 v5, s2"); A("v_mov_b32 v6, 1")
A("v_cmp_eq_u32 vcc, 0, v2"); A("s_and_saveexec_b64 s[36:37], vcc"); A("global_store_byte v5, v6, s[86:87] sc1"); A("s_mov_b64 exec, s[36:37]")
A("v_lshlrev_b32 v5, 2, v2")
spin_head("L_pf")
A("global_load_dword v6, v5, s[86:87] sc1"); A("s_waitcnt vmcnt(0)")
A("v_cmp_ne_u32 vcc, 0x01010101, v6")
spin_tail("L_pf", "L_pf_done")
LB("L_c_wait")
A("s_barrier")
A("s_cmp_ge_u32 s31, 2"); A("s_cbranch_scc1 L_hg")
C("q gather: waves 0,1: thread t (0..127) cols 4t..4t+3")
A("s_lshl_b32 s32, s31, 6"); A("v_add_u32 v5, s32, v2")
A("v_lshlrev_b32 v6, 4, v5")
A(f"s_lshl_b32 s32, s22, 14"); A("s_lshl_b32 s33, s20, 11"); A("s_add_u32 s32, s32, s33"); A(f"s_add_u32 s32, s32, {WQP}"); A("v_add_u32 v6, s32, v6")
for kg in range(4):
    A(f"v_add_u32 v7, {kg*131072}, v6"); A(f"global_load_dwordx4 v[{16+4*kg}:{19+4*kg}], v7, s[88:89] sc1")
A("s_waitcnt vmcnt(0)")
for i in range(4):
    A(f"v_add_f32 v{16+i}, v{16+i}, v{20+i}"); A(f"v_add_f32 v{24+i}, v{24+i}, v{28+i}"); A(f"v_add_f32 v{16+i}, v{16+i}, v{24+i}")
A("v_cvt_pk_bf16_f32 v20, v16, v17"); A("v_cvt_pk_bf16_f32 v21, v18, v19")
A("v_lshlrev_b32 v6, 3, v5"); A(f"v_add_u32 v6, {LQ}, v6"); A("ds_write_b64 v6, v[20:21]")
A("s_branch L_gd")
LB("L_hg")
C("h gather: waves 2,3: t' (0..127): b = t'>>4, fq = t'&15 (14 valid)")
A("s_sub_u32 s32, s31, 2"); A("s_lshl_b32 s32, s32, 6"); A("v_add_u32 v5, s32, v2")
A("v_lshrrev_b32 v6, 4, v5"); A("v_and_b32 v7, 15, v5")
A("v_min_u32 v8, 13, v7")
A("v_mul_u32_u24 v9, 7168, v6"); A("v_lshl_add_u32 v9, v8, 4, v9")
A("s_mul_i32 s32, s21, 224"); A(f"s_add_u32 s32, s32, {WHP}"); A("v_add_u32 v9, s32, v9")
for kg in range(4):
    A(f"v_add_u32 v10, {kg*8*7168}, v9"); A(f"global_load_dwordx4 v[{16+4*kg}:{19+4*kg}], v10, s[88:89] sc1")
A("s_mul_i32 s32, s21, 112"); A("v_lshlrev_b32 v10, 3, v8"); A("v_add_u32 v10, s32, v10")
A("global_load_dwordx2 v[32:33], v10, s[78:79]")
A("s_waitcnt vmcnt(0)")
for i in range(4):
    A(f"v_add_f32 v{16+i}, v{16+i}, v{20+i}"); A(f"v_add_f32 v{24+i}, v{24+i}, v{28+i}"); A(f"v_add_f32 v{16+i}, v{16+i}, v{24+i}")
    rnd1(16+i)
A("v_lshlrev_b32 v20, 16, v32"); A("v_and_b32 v21, 0xffff0000, v32"); A("v_lshlrev_b32 v22, 16, v33"); A("v_and_b32 v23, 0xffff0000, v33")
A("s_mov_b32 s32, 0x3d372713"); A("s_mov_b32 s33, 0x40135761")
for i in range(4):
    x = 16+i
    A(f"v_add_f32 v{x}, v{x}, v{20+i}"); rnd1(x)
    A(f"v_mul_f32 v24, v{x}, v{x}"); A(f"v_mul_f32 v24, s32, v24"); A(f"v_fma_f32 v24, v24, v{x}, v{x}")
    A(f"v_mul_f32 v24, s33, v24"); A("v_exp_f32 v24, v24"); nop(1)
    A("v_add_f32 v24, 1.0, v24"); A("v_rcp_f32 v24, v24"); nop(1)
    A("v_fma_f32 v24, v24, -2.0, 1.0")
    A("v_add_f32 v24, 1.0, v24"); A(f"v_mul_f32 v24, v24, v{x}"); A(f"v_mul_f32 v{x}, 0.5, v24")
A("v_cvt_pk_bf16_f32 v20, v16, v17"); A("v_cvt_pk_bf16_f32 v21, v18, v19")
A("v_cmp_gt_u32 vcc, 14, v7"); nop(2); A("v_cndmask_b32 v20, 0, v20, vcc"); A("v_cndmask_b32 v21, 0, v21, vcc")
A(f"v_mul_u32_u24 v9, {HPITCH}, v6"); A("v_lshl_add_u32 v9, v7, 3, v9"); A(f"v_add_u32 v9, {LH}, v9")
A("ds_write_b64 v9, v[20:21]")
LB("L_gd")
A("s_waitcnt lgkmcnt(0)")
A("s_barrier")
C("FFN2: n-tile = cw")
A("v_and_b32 v5, 7, v3"); A(f"v_mul_u32_u24 v5, {HPITCH}, v5"); A("v_lshl_add_u32 v5, v4, 4, v5"); A(f"v_add_u32 v5, {LH}, v5")
A("ds_read_b128 v[16:19], v5"); A("ds_read_b128 v[20:23], v5 offset:64")
A("v_lshrrev_b32 v6, 2, v3"); A("v_lshl_add_u32 v6, v4, 3, v6"); A("v_lshlrev_b32 v6, 7, v6")
A("v_and_b32 v7, 3, v3"); A("v_lshl_add_u32 v6, v7, 3, v6")
A("s_lshl_b32 s32, s31, 5"); A(f"s_add_u32 s32, s32, {LW2}"); A("v_add_u32 v6, s32, v6")
for s in range(2):
    A(f"ds_read_b64_tr_b16 v[{32+4*s}:{33+4*s}], v6 offset:{s*4096}")
    A(f"ds_read_b64_tr_b16 v[{34+4*s}:{35+4*s}], v6 offset:{s*4096+512}")
for i in range(4): A(f"v_mov_b32 v{48+i}, 0")
A("v_lshlrev_b32 v7, 10, v4"); A("v_lshl_add_u32 v7, v3, 2, v7")
A("s_lshl_b32 s32, s2, 11"); A("s_lshl_b32 s33, s31, 6"); A("s_add_u32 s32, s32, s33"); A(f"s_add_u32 s32, s32, {WYB}"); A("v_add_u32 v7, s32, v7")
A("s_waitcnt lgkmcnt(0)")
A("v_mfma_f32_16x16x32_bf16 v[48:51], v[16:19], v[32:35], v[48:51]")
A("v_mfma_f32_16x16x32_bf16 v[48:51], v[20:23], v[36:39], v[48:51]")
nop(8); nop(2)
for r in range(4): guard(48+r)
A("v_cmp_gt_u32 vcc, 32, v2"); A("s_and_saveexec_b64 s[36:37], vcc")
for r in range(4): A(f"global_store_dword v7, v{48+r}, s[88:89] offset:{r*256} sc1")
A("s_mov_b64 exec, s[36:37]")
A("s_barrier")
A("s_barrier")
A("s_cmp_lg_u32 s31, 0"); A("s_cbranch_scc1 L_c_rest")
C("wave 0: stats publish, stat poll, weights")
A("v_and_b32 v5, 3, v2"); A("v_lshlrev_b32 v5, 5, v5")
A(f"v_add_u32 v6, {LMX}, v5")
A("ds_read_b128 v[16:19], v6"); A("ds_read_b128 v[20:23], v6 offset:16")
A("ds_read_b128 v[24:27], v6 offset:128"); A("ds_read_b128 v[28:31], v6 offset:144")
A("s_waitcnt lgkmcnt(0)")
A("v_max3_f32 v16, v16, v17, v18"); A("v_max3_f32 v16, v16, v19, v20"); A("v_max3_f32 v16, v16, v21, v22"); A("v_max_f32 v16, v16, v23")
A("v_add_f32 v24, v24, v25")
for i in range(26, 32): A(f"v_add_f32 v24, v24, v{i}")
A("v_cmp_gt_u32 vcc, 4, v2"); nop(2); A("v_cndmask_b32 v16, v24, v16, vcc")
guard(16)
A(f"s_lshl_b32 s32, s2, 6"); A(f"s_add_u32 s32, s32, {WST}"); A("v_lshlrev_b32 v7, 2, v2"); A("v_add_u32 v7, s32, v7")
A("v_cmp_gt_u32 vcc, 8, v2"); A("s_and_saveexec_b64 s[36:37], vcc"); A("global_store_dword v7, v16, s[88:89] sc1"); A("s_mov_b64 exec, s[36:37]")
A("v_and_b32 v5, 31, v2"); A("v_lshlrev_b32 v5, 9, v5")
A("s_lshl_b32 s32, s20, 6"); A("s_lshr_b32 s33, s22, 1"); A("s_lshl_b32 s33, s33, 2"); A("s_add_u32 s32, s32, s33"); A(f"s_add_u32 s32, s32, {WST}"); A("v_add_u32 v5, s32, v5")
spin_head("L_ps")
A("global_load_dword v16, v5, s[88:89] sc1"); A("global_load_dword v17, v5, s[88:89] offset:16 sc1"); A("s_waitcnt vmcnt(0)")
A("v_cmp_eq_u32 vcc, -1, v16"); A("v_cmp_eq_u32 s[36:37], -1, v17"); A("s_or_b64 vcc, vcc, s[36:37]")
spin_tail("L_ps", "L_ps_done")
A("v_mov_b32 v18, v16")
dpp_add(18, "quad_perm:[1,0,3,2]", "v_max_f32"); dpp_add(18, "quad_perm:[2,3,0,1]", "v_max_f32")
A("v_sub_f32 v16, v16, v18"); A("v_mul_f32 v16, 0x3fb8aa3b, v16"); A("v_exp_f32 v16, v16"); nop(1)
A("v_mul_f32 v17, v17, v16")
dpp_add(17, "quad_perm:[1,0,3,2]"); dpp_add(17, "quad_perm:[2,3,0,1]")
A("v_rcp_f32 v17, v17"); nop(1); A("v_mul_f32 v16, v16, v17")
A("v_and_b32 v5, 31, v2"); A("v_lshlrev_b32 v5, 2, v5"); A(f"v_add_u32 v5, {LWT}, v5"); A("ds_write_b32 v5, v16")
A("s_waitcnt lgkmcnt(0)")
LB("L_c_rest")
A("s_barrier")
A("s_barrier")
A("s_cmp_lg_u32 s31, 0"); A("s_cbranch_scc1 L_end")
C("final: wave 0")
A("v_lshrrev_b32 v5, 2, v2"); A("v_and_b32 v6, 3, v2")
A("v_lshlrev_b32 v7, 14, v5"); A("v_lshl_add_u32 v7, v6, 4, v7")
A("s_lshl_b32 s32, s20, 11"); A("s_lshl_b32 s33, s22, 8"); A("s_add_u32 s32, s32, s33"); A("s_lshl_b32 s33, s23, 6"); A("s_add_u32 s32, s32, s33"); A(f"s_add_u32 s32, s32, {WYB}")
A("v_add_u32 v7, s32, v7"); A("v_add_u32 v8, 0x40000, v7")
A("s_lshl_b32 s32, s20, 7"); A("s_lshl_b32 s33, s23, 5"); A("s_add_u32 s32, s32, s33"); A("v_lshlrev_b32 v9, 3, v6"); A("v_add_u32 v9, s32, v9")
A("global_load_dwordx2 v[40:41], v9, s[82:83]")
A("s_lshl_b32 s33, s22, 10"); A("v_add_u32 v10, s33, v9")
A("global_load_dwordx2 v[42:43], v10, s[64:65]")
def chk4(base, first):
    for i in range(4):
        if first and i == 0:
            A(f"v_cmp_eq_u32 s[38:39], -1, v{base}")
        else:
            A(f"v_cmp_eq_u32 vcc, -1, v{base+i}"); A("s_or_b64 s[38:39], s[38:39], vcc")
def red16(base):
    for i in range(4): dpp_add(base+i, "row_shr:4")
    for i in range(4): dpp_add(base+i, "row_shr:8")
    for i in range(4): red_g(base+i, 11, "v_add_f32")
spin_head("L_py")
A("global_load_dwordx4 v[16:19], v7, s[88:89] sc1"); A("global_load_dwordx4 v[20:23], v8, s[88:89] sc1"); A("s_waitcnt vmcnt(0)")
chk4(16, True); chk4(20, False); A("s_mov_b64 vcc, s[38:39]")
spin_tail("L_py", "L_py_done")
for i in range(4): A(f"v_add_f32 v{16+i}, v{16+i}, v{20+i}")
red16(16)
A("v_lshlrev_b32 v20, 16, v40"); A("v_and_b32 v21, 0xffff0000, v40"); A("v_lshlrev_b32 v22, 16, v41"); A("v_and_b32 v23, 0xffff0000, v41")
for i in range(4):
    x = 16+i
    rnd1(x); A(f"v_add_f32 v{x}, v{x}, v{20+i}"); rnd1(x)
    A(f"v_mul_f32 v24, 0xbfb8aa3b, v{x}"); A("v_exp_f32 v24, v24"); nop(1); A("v_add_f32 v24, 1.0, v24"); A("v_rcp_f32 v24, v24"); nop(1)
    A(f"v_mul_f32 v{x}, v{x}, v24"); rnd1(x)
A("v_and_b32 v7, 7, v5"); A("v_lshrrev_b32 v8, 3, v5"); A("v_lshl_add_u32 v7, v8, 5, v7")
A("v_lshlrev_b32 v7, 12, v7"); A("v_lshl_add_u32 v7, v6, 4, v7")
A("s_lshr_b32 s32, s20, 1"); A("s_lshl_b32 s32, s32, 15")
A("s_lshl_b32 s33, s22, 9"); A("s_add_u32 s32, s32, s33")
A("s_and_b32 s33, s20, 1"); A("s_lshl_b32 s33, s33, 2"); A("s_add_u32 s33, s33, s23"); A("s_lshl_b32 s33, s33, 6"); A("s_add_u32 s32, s32, s33")
A(f"s_add_u32 s32, s32, {WSB}"); A("v_add_u32 v44, s32, v7")
for i in range(1, 4): A(f"v_add_u32 v{44+i}, {i*2*32*4096}, v44")
spin_head("L_pz")
for i in range(4): A(f"global_load_dwordx4 v[{24+4*i}:{27+4*i}], v{44+i}, s[88:89] sc1")
A("s_waitcnt vmcnt(0)")
chk4(24, True); chk4(28, False); chk4(32, False); chk4(36, False); A("s_mov_b64 vcc, s[38:39]")
spin_tail("L_pz", "L_pz_done")
for i in range(4):
    A(f"v_add_f32 v{24+i}, v{24+i}, v{28+i}"); A(f"v_add_f32 v{32+i}, v{32+i}, v{36+i}"); A(f"v_add_f32 v{24+i}, v{24+i}, v{32+i}")
red16(24)
A("v_lshlrev_b32 v20, 16, v42"); A("v_and_b32 v21, 0xffff0000, v42"); A("v_lshlrev_b32 v22, 16, v43"); A("v_and_b32 v23, 0xffff0000, v43")
for i in range(4):
    x = 24+i
    rnd1(x); A(f"v_mul_f32 v{x}, v{x}, v{16+i}"); rnd1(x); A(f"v_add_f32 v{x}, v{x}, v{20+i}")
A("v_cvt_pk_bf16_f32 v28, v24, v25"); A("v_cvt_pk_bf16_f32 v29, v26, v27")
A("v_cmp_le_u32 vcc, 12, v2"); A("v_cmp_gt_u32 s[36:37], 16, v2"); A("s_and_b64 vcc, vcc, s[36:37]"); A("s_and_saveexec_b64 s[36:37], vcc")
A("global_store_dwordx2 v10, v[28:29], s[84:85]")
LB("L_end")
A("s_endpgm")
L.append('.section .rodata,"a"')
L.append(".p2align 6")
L.append(f".amdhsa_kernel {NAME}_kernel")
L.append("  .amdhsa_next_free_vgpr 168"); L.append("  .amdhsa_next_free_sgpr 102"); L.append("  .amdhsa_accum_offset 168")
L.append("  .amdhsa_group_segment_fixed_size 0"); L.append("  .amdhsa_kernarg_size 104"); L.append("  .amdhsa_user_sgpr_count 2")
L.append("  .amdhsa_user_sgpr_kernarg_segment_ptr 1"); L.append("  .amdhsa_system_sgpr_workgroup_id_x 1")
L.append(".end_amdhsa_kernel")
out = [x for x in L if x is not None]
dst = [a for a in sys.argv[1:] if not a.startswith("--")]
open(dst[0] if dst else f"cdna_kernels/{NAME}.s", "w").write("\n".join(out) + "\n")
```

```python
import sys
NAME = "recurrent_scan__sliding_block_cached__dense_activation_gelu__decode"
STAMPS = "--stamps" in sys.argv
DEPTH = 2
for a in sys.argv:
    if a.startswith("--depth="): DEPTH = int(a.split("=")[1])
L = []
def A(s): L.append("    " + s)
def LB(s): L.append(s + ":")
def C(s): L.append("    ; " + s)

LK = 0; LWQ = 65536; LW1 = 81920; LWO = 98304; LW2 = 114688; LXN = 122880; XNP = 1040
LQ = 131328; LH = 132352; HPITCH = 144; LO = 133504; LMX = 134656; LLS = 134784; LSY = 134912
LP = 135168
LORED = 65536
LDS_TOTAL = 139264
WQP = 0x0; WHP = 0x100000; WOB = 0x200000; WSB = 0x400000; WYB = 0x600000; WFL = 0x700000; WTM = 0x800000
SPIN = 200000

def nop(n):
    while n > 0:
        k = min(n, 16); A(f"s_nop {k-1}"); n -= k
def stamp(k):
    if not STAMPS: return
    A("s_memrealtime s[98:99]"); A("s_waitcnt lgkmcnt(0)")
    A(f"v_writelane_b32 v126, s98, {k}")
def stamp_flush(base):
    if not STAMPS: return
    A("s_mov_b64 exec, -1")
    A(f"s_lshl_b32 s97, s2, 9"); A(f"s_add_u32 s97, s97, {WTM + base}")
    A("v_lshlrev_b32 v127, 2, v2"); A("v_add_u32 v127, s97, v127")
    A("global_store_dword v127, v126, s[88:89]")
def srd(d, p, n):
    A(f"s_mov_b32 s{d}, s{p}"); A(f"s_mov_b32 s{d+1}, s{p+1}"); A(f"s_mov_b32 s{d+2}, {hex(n)}"); A(f"s_mov_b32 s{d+3}, 0x20000")
def dpp_add(v, ctrl, op="v_add_f32"):
    nop(2)
    bc = " bound_ctrl:0" if "shr" in ctrl else ""
    A(f"{op}_dpp v{v}, v{v}, v{v} {ctrl} row_mask:0xf bank_mask:0xf{bc}")
def allred32(v, t, op="v_add_f32"):
    dpp_add(v, "quad_perm:[1,0,3,2]", op); dpp_add(v, "quad_perm:[2,3,0,1]", op)
    dpp_add(v, "row_half_mirror", op); dpp_add(v, "row_mirror", op)
    A(f"v_mov_b32 v{t}, v{v}"); nop(2)
    A(f"v_permlane16_swap_b32 v{v}, v{t}"); nop(1)
    A(f"{op} v{v}, v{v}, v{t}")
def red_g(v, t, op):
    A(f"v_mov_b32 v{t}, v{v}"); nop(2)
    A(f"v_permlane16_swap_b32 v{v}, v{t}"); nop(1)
    A(f"{op} v{v}, v{v}, v{t}")
    A(f"v_mov_b32 v{t}, v{v}"); nop(2)
    A(f"v_permlane32_swap_b32 v{v}, v{t}"); nop(1)
    A(f"{op} v{v}, v{v}, v{t}")
def rnd1(v):
    A(f"v_cvt_pk_bf16_f32 v{v}, v{v}, v{v}"); A(f"v_lshlrev_b32 v{v}, 16, v{v}")
def spin_head(lbl):
    A("s_mov_b32 s96, 0"); LB(lbl)
def spin_tail(lbl, done, sleep=0):
    A(f"s_cbranch_vccz {done}")
    if sleep: A(f"s_sleep {sleep}")
    A("s_add_u32 s96, s96, 1"); A(f"s_cmp_lt_u32 s96, {SPIN}"); A(f"s_cbranch_scc1 {lbl}")
    LB(done)
def chk(regs, cmp, val):
    for i, r in enumerate(regs):
        if i == 0: A(f"v_cmp_{cmp}_u32 s[38:39], {val}, v{r}")
        else:
            A(f"v_cmp_{cmp}_u32 vcc, {val}, v{r}"); A("s_or_b64 s[38:39], s[38:39], vcc")
    A("s_mov_b64 vcc, s[38:39]")
def chk_tags(regs): chk(regs, "ne", "s95")
def chk_empty(regs): chk(regs, "eq", "-1")
def guard(v):
    A(f"v_cmp_eq_u32 vcc, -1, v{v}"); nop(2)
    A(f"v_cndmask_b32 v{v}, v{v}, v124, vcc")
_n = [0]
def lds_inc(off):
    A("s_waitcnt lgkmcnt(0)")
    A("v_mov_b32 v123, 1")
    A("s_mov_b64 s[36:37], exec"); A("s_mov_b64 exec, 1")
    A(f"ds_add_u32 v125, v123 offset:{off}")
    A("s_mov_b64 exec, s[36:37]")
def lds_wait(off, val):
    _n[0] += 1; n = _n[0]
    spin_head(f"L_lw{n}")
    A(f"ds_read_b32 v123, v125 offset:{off}"); A("s_waitcnt lgkmcnt(0)")
    A(f"v_cmp_gt_u32 vcc, {val}, v123")
    spin_tail(f"L_lw{n}", f"L_lw{n}_d")
_cb = [0]; _bb = [0]
def cbar():
    _cb[0] += 1; lds_inc(0); lds_wait(0, 4*_cb[0])
def bbar():
    _bb[0] += 1; lds_inc(8); lds_wait(8, 8*_bb[0])

L.append(f"; @launch grid=(256,1,1) block=(768,1,1) lds={LDS_TOTAL}")
L.append('.amdgcn_target "amdgcn-amd-amdhsa--gfx950"')
L.append(".text")
L.append(f".globl {NAME}_kernel"); L.append(".p2align 8"); L.append(f".type {NAME}_kernel,@function")
LB(f"{NAME}_kernel")
A("s_cmp_ge_u32 s2, 256"); A("s_cbranch_scc1 L_end")
A("s_load_dwordx16 s[64:79], s[0:1], 0")
A("s_load_dwordx8 s[80:87], s[0:1], 64")
A("s_load_dwordx2 s[88:89], s[0:1], 96")
A("s_and_b32 s20, s2, 7"); A("s_lshr_b32 s21, s2, 3"); A("s_lshr_b32 s22, s21, 2"); A("s_and_b32 s23, s21, 3")
A("v_lshrrev_b32 v1, 6, v0"); A("v_and_b32 v2, 63, v0")
A("v_readfirstlane_b32 s30, v1")
A("s_lshl_b32 s24, s22, 3"); A("s_add_u32 s24, s24, s20"); A("s_lshl_b32 s24, s24, 20"); A("s_add_u32 s24, s24, 0xC0000")
A("s_lshl_b32 s25, s23, 16"); A("s_add_u32 s25, s25, s24")
A("v_and_b32 v3, 15, v2"); A("v_lshrrev_b32 v4, 4, v2")
A(f"v_mov_b32 v125, {LSY}"); A("v_mov_b32 v124, 0x7fc00000")
A("s_waitcnt lgkmcnt(0)")
A("s_cmp_ge_u32 s30, 8"); A("s_cbranch_scc1 L_ctrl")

C("bulk waves")
stamp(0)
srd(8, 66, 0x4000000); srd(12, 68, 0x4000000); srd(44, 72, 0x400000); srd(52, 80, 512*1792*2)
A("s_lshl_b32 s31, s30, 13")
A("s_add_u32 s26, s31, s25"); A("s_add_u32 s27, s26, 4096")
for nn in range(4):
    A(f"v_add_u32 v5, {4*nn}, v4"); A("v_xor_b32 v5, v5, v3"); A("v_lshlrev_b32 v5, 4, v5"); A(f"v_lshl_add_u32 v{6+nn}, v4, 8, v5")
A("v_lshrrev_b32 v10, 3, v2"); A("v_lshlrev_b32 v10, 10, v10"); A("v_and_b32 v11, 7, v2"); A("v_lshl_add_u32 v10, v11, 4, v10")
A("s_mul_i32 s32, s21, 56"); A("s_lshl_b32 s33, s30, 3"); A("s_add_u32 s32, s32, s33"); A("s_lshl_b32 s32, s32, 10")
A("s_lshl_b32 s33, s20, 7"); A("s_add_u32 s32, s32, s33")
A("s_lshl_b32 s33, s30, 10"); A(f"s_add_u32 s33, s33, {LW2}")
A("v_lshlrev_b32 v12, 4, v2"); A("v_add_u32 v12, s31, v12"); A("v_add_u32 v13, 4096, v12")
A("v_lshlrev_b32 v14, 10, v4"); A("v_lshl_add_u32 v14, v3, 4, v14")
A("s_lshl_b32 s34, s20, 9"); A("s_lshl_b32 s35, s22, 6"); A("s_add_u32 s34, s34, s35"); A("s_lshl_b32 s35, s30, 3"); A("s_add_u32 s34, s34, s35")
A("s_lshl_b32 s34, s34, 10"); A("s_lshl_b32 s35, s23, 8"); A("s_add_u32 s34, s34, s35")
A("s_lshl_b32 s35, s30, 11"); A(f"s_add_u32 s35, s35, {LWO}")
A("v_and_b32 v15, 7, v3"); A("v_and_b32 v16, 1, v15"); A("v_lshrrev_b32 v17, 1, v15")
A("v_mov_b32 v18, 0xffff"); A("v_mov_b32 v19, 0xffff0000")
A("v_cmp_eq_u32 vcc, 1, v16"); nop(2); A("v_cndmask_b32 v18, v18, v19, vcc")
for r in range(4):
    A(f"v_cmp_eq_u32 vcc, {r}, v17"); nop(2); A(f"v_cndmask_b32 v{112+r}, 0, v18, vcc")
ops = []
for n in range(8):
    def f(n=n):
        if n == 0: A("s_mov_b32 m0, s31"); nop(1)
        if n == 4: A("s_add_u32 m0, s31, 4096"); nop(1)
        A(f"buffer_load_dwordx4 v{6+(n&3)}, s[8:11], s{26 if n<4 else 27} offen offset:{(n&3)*1024} nt lds")
    ops.append(f)
def fw2():
    A("s_cmp_eq_u32 s30, 7"); A("s_cbranch_scc1 L_w2zero")
    A("s_mov_b32 m0, s33"); nop(1)
    A("buffer_load_dwordx4 v10, s[52:55], s32 offen nt lds")
    A("s_branch L_w2done")
    LB("L_w2zero")
    for i in range(4): A(f"v_mov_b32 v{116+i}, 0")
    A(f"v_lshlrev_b32 v11, 4, v2"); A(f"v_add_u32 v11, {LW2 + 7168}, v11")
    A("ds_write_b128 v11, v[116:119]")
    A("buffer_load_dwordx4 v[116:119], v10, s[52:55], 0 offen")
    LB("L_w2done")
ops.append(fw2)
for n in range(8):
    def f(n=n): A(f"buffer_load_dwordx4 v[{16+4*n}:{19+4*n}], v{12 if n<4 else 13}, s[12:15], s25 offen offset:{(n%4)*1024} nt")
    ops.append(f)
def fwo0():
    A("s_mov_b32 m0, s35"); nop(1); A("buffer_load_dwordx4 v14, s[44:47], s34 offen nt lds")
def fwo1():
    A("s_add_u32 m0, s35, 1024"); A("s_add_u32 s34, s34, 4096"); A("buffer_load_dwordx4 v14, s[44:47], s34 offen nt lds")
ops += [fwo0, fwo1]
A("s_barrier")
for i, f in enumerate(ops):
    if i >= DEPTH: A(f"s_waitcnt vmcnt({DEPTH-1})")
    if i == 9 + DEPTH - 0 and False: pass
    if i == 8 + DEPTH + 1 - 0: pass
    if i == 9 + DEPTH - 1 + 0 and False: pass
    if i == 8 + DEPTH:
        lds_inc(16); stamp(1)
    f()
C("wait P, build B operands")
lds_wait(20, 4)
stamp(2)
A("v_lshrrev_b32 v5, 3, v3"); A("v_lshlrev_b32 v5, 7, v5"); A("v_lshl_add_u32 v5, v4, 5, v5")
A("s_lshl_b32 s33, s30, 9"); A(f"s_add_u32 s33, s33, {LP}"); A("v_add_u32 v5, s33, v5")
A("ds_read_b128 v[80:83], v5"); A("ds_read_b128 v[84:87], v5 offset:16")
A("ds_read_b128 v[88:91], v5 offset:256"); A("ds_read_b128 v[92:95], v5 offset:272")
for i in range(8): A(f"v_mov_b32 v{96+i}, 0")
A("s_waitcnt lgkmcnt(0)")
stamp(3)
C("PV")
for i in range(8):
    base = 48 + (i & 3) * 8
    for hp in range(2):
        for q in range(4): A(f"v_and_b32 v{base+4*hp+q}, v{80+8*hp+i}, v{112+q}")
    A(f"s_waitcnt vmcnt({7-i+2})")
    for hp in range(2):
        A(f"v_mfma_f32_16x16x32_bf16 v[{96+4*hp}:{99+4*hp}], v[{16+4*i}:{19+4*i}], v[{base+4*hp}:{base+4*hp+3}], v[{96+4*hp}:{99+4*hp}]")
A("s_lshl_b32 s33, s30, 11"); A(f"s_add_u32 s33, s33, {LORED}"); A("v_lshlrev_b32 v9, 4, v2"); A("v_add_u32 v9, s33, v9")
nop(8)
A("ds_write_b128 v9, v[96:99]"); A("ds_write_b128 v9, v[100:103] offset:1024")
A("s_waitcnt vmcnt(0)")
stamp(4)
bbar()
stamp(5)
A(f"v_lshlrev_b32 v9, 2, v0"); A(f"v_add_u32 v9, {LORED}, v9")
for w in range(8): A(f"ds_read_b32 v{48+w}, v9 offset:{w*2048}")
A("v_and_b32 v15, 7, v2"); A("v_lshrrev_b32 v5, 1, v15"); A("v_lshlrev_b32 v5, 4, v5"); A("v_and_b32 v6, 1, v15"); A("v_lshl_add_u32 v5, v6, 7, v5"); A(f"v_add_u32 v5, {LMX}, v5")
A("ds_read_b128 v[56:59], v5")
A("v_lshrrev_b32 v10, 2, v3"); A("v_lshl_add_u32 v10, v4, 3, v10"); A("v_lshlrev_b32 v10, 8, v10")
A("v_and_b32 v11, 3, v3"); A("v_lshl_add_u32 v10, v11, 3, v10")
A("s_lshl_b32 s33, s30, 5"); A(f"s_add_u32 s33, s33, {LWO}"); A("v_add_u32 v10, s33, v10")
for s in range(2):
    A(f"ds_read_b64_tr_b16 v[{104+4*s}:{105+4*s}], v10 offset:{s*8192}")
    A(f"ds_read_b64_tr_b16 v[{106+4*s}:{107+4*s}], v10 offset:{s*8192+1024}")
A("v_lshrrev_b32 v11, 8, v0"); A("v_lshrrev_b32 v12, 2, v0"); A("v_and_b32 v12, 63, v12")
A("v_and_b32 v13, 15, v12"); A("v_lshrrev_b32 v14, 4, v12"); A("v_and_b32 v15, 3, v0")
A("v_lshrrev_b32 v5, 3, v13"); A("v_lshl_add_u32 v5, v11, 1, v5")
A("v_lshlrev_b32 v5, 7, v5"); A("v_lshl_add_u32 v5, v14, 5, v5"); A("v_lshl_add_u32 v5, v15, 3, v5")
A("v_and_b32 v13, 7, v13"); A("v_add_u32 v5, v5, v13"); A("v_lshlrev_b32 v5, 2, v5")
A(f"s_lshl_b32 s33, s2, 12"); A(f"s_add_u32 s33, s33, {WOB}"); A("v_add_u32 v5, s33, v5")
A("s_waitcnt lgkmcnt(5)")
A("v_add_f32 v48, v48, v49"); A("v_add_f32 v50, v50, v51"); A("v_add_f32 v52, v52, v53"); A("v_add_f32 v54, v54, v55")
A("v_add_f32 v48, v48, v50"); A("v_add_f32 v52, v52, v54"); A("v_add_f32 v64, v48, v52")
guard(64)
A("global_store_dword v5, v64, s[88:89] sc1")
A("s_cmp_lg_u32 s30, 0"); A("s_cbranch_scc1 L_nostat")
A("s_waitcnt lgkmcnt(4)")
A("v_max3_f32 v8, v56, v57, v58"); A("v_max_f32 v8, v8, v59")
A("v_add_f32 v66, v56, v57"); A("v_add_f32 v66, v66, v58"); A("v_add_f32 v66, v66, v59")
A("v_cmp_eq_u32 vcc, 0, v6"); nop(2); A("v_cndmask_b32 v66, v66, v8, vcc")
guard(66)
A(f"v_lshlrev_b32 v7, 2, v2"); A(f"s_add_u32 s33, s33, 2048"); A("v_add_u32 v7, s33, v7")
A("v_cmp_gt_u32 vcc, 8, v2"); A("s_and_saveexec_b64 s[36:37], vcc"); A("global_store_dword v7, v66, s[88:89] sc1"); A("s_mov_b64 exec, s[36:37]")
LB("L_nostat")
C("combine")
A("s_lshl_b32 s33, s30, 5"); A("s_add_u32 s33, s33, s20"); A("s_lshl_b32 s33, s33, 12"); A(f"s_add_u32 s33, s33, {WOB}")
A("s_lshl_b32 s34, s22, 8"); A("s_add_u32 s34, s34, s33")
A("v_lshlrev_b32 v5, 2, v2"); A("v_add_u32 v5, s34, v5")
A("s_lshr_b32 s34, s22, 1"); A("s_lshl_b32 s34, s34, 3"); A("s_add_u32 s34, s34, s33"); A("s_add_u32 s34, s34, 2048"); A("v_mov_b32 v6, s34")
for c in range(1, 4):
    A(f"v_add_u32 v{68+c}, {c*0x8000}, v5"); A(f"v_add_u32 v{72+c}, {c*0x8000}, v6")
A("v_mov_b32 v68, v5"); A("v_mov_b32 v72, v6")
lds_wait(12, 1)
spin_head("L_po")
for c in range(4): A(f"global_load_dword v{48+c}, v{68+c}, s[88:89] sc1")
for c in range(4): A(f"global_load_dwordx2 v[{76+2*c}:{77+2*c}], v{72+c}, s[88:89] sc1")
A("s_waitcnt vmcnt(0)")
chk_empty([48, 49, 50, 51] + list(range(76, 84)))
spin_tail("L_po", "L_po_done")
stamp(6)
A("v_max3_f32 v8, v76, v78, v80"); A("v_max_f32 v8, v8, v82")
for c in range(4):
    m = 76+2*c
    A(f"v_sub_f32 v{m}, v{m}, v8"); A(f"v_mul_f32 v{m}, 0x3fb8aa3b, v{m}"); A(f"v_exp_f32 v{m}, v{m}")
nop(1)
A("v_mul_f32 v9, v76, v77"); A("v_fmac_f32 v9, v78, v79"); A("v_fmac_f32 v9, v80, v81"); A("v_fmac_f32 v9, v82, v83")
A("v_rcp_f32 v9, v9")
A("v_mul_f32 v48, v48, v76"); A("v_fmac_f32 v48, v49, v78"); A("v_fmac_f32 v48, v50, v80"); A("v_fmac_f32 v48, v51, v82")
A("v_mul_f32 v48, v48, v9")
A("v_cvt_pk_bf16_f32 v48, v48, v48")
A(f"s_mul_i32 s33, s30, {HPITCH}"); A(f"s_add_u32 s33, s33, {LO}"); A("v_lshlrev_b32 v6, 1, v2"); A("v_add_u32 v6, s33, v6")
A("ds_write_b16 v6, v48")
A("v_and_b32 v6, 7, v3"); A(f"v_mul_u32_u24 v6, {HPITCH}, v6"); A("v_lshl_add_u32 v6, v4, 4, v6"); A(f"v_add_u32 v6, {LO}, v6")
for i in range(4): A(f"v_mov_b32 v{56+i}, 0")
A("v_lshlrev_b32 v5, 11, v4"); A("v_lshl_add_u32 v5, v3, 2, v5")
A("s_lshl_b32 s33, s2, 12"); A("s_lshl_b32 s34, s30, 6"); A("s_add_u32 s33, s33, s34"); A(f"s_add_u32 s33, s33, {WSB}"); A("v_add_u32 v5, s33, v5")
bbar()
A("ds_read_b128 v[48:51], v6"); A("ds_read_b128 v[52:55], v6 offset:64")
A("s_waitcnt lgkmcnt(0)")
A("v_mfma_f32_16x16x32_bf16 v[56:59], v[48:51], v[104:107], v[56:59]")
A("v_mfma_f32_16x16x32_bf16 v[56:59], v[52:55], v[108:111], v[56:59]")
nop(10)
for r in range(4): guard(56+r)
A("v_cmp_gt_u32 vcc, 32, v2"); A("s_and_saveexec_b64 s[36:37], vcc")
for r in range(4): A(f"global_store_dword v5, v{56+r}, s[88:89] offset:{r*512} sc1")
stamp(7)
if STAMPS:
    A("s_cmp_lg_u32 s30, 0"); A("s_cbranch_scc1 L_end")
    stamp_flush(256)
A("s_endpgm")

LB("L_ctrl")
C("control waves")
stamp(0)
A("s_setprio 3")
A("s_sub_u32 s31, s30, 8")
A("s_cmp_lg_u32 s30, 8"); A("s_cbranch_scc1 L_n0"); A("s_cmp_lg_u32 s2, 0"); A("s_cbranch_scc1 L_n0")
A("s_memrealtime s[96:97]"); A("s_waitcnt lgkmcnt(0)"); A("s_or_b32 s96, s96, 1")
A("v_mov_b32 v12, s96"); A("v_mov_b32 v13, 0")
A("s_mov_b64 exec, 1"); A("global_store_dword v13, v12, s[86:87] sc1"); A("s_mov_b64 exec, -1")
LB("L_n0")
srd(40, 70, 0x400000); srd(48, 76, 512*1792*2)
A("v_lshrrev_b32 v5, 5, v2"); A("v_and_b32 v6, 31, v2")
A("s_lshl_b32 s32, s31, 1"); A("v_add_u32 v7, s32, v5")
A("v_lshlrev_b32 v8, 10, v7"); A("v_lshl_add_u32 v8, v6, 5, v8")
A("global_load_dwordx4 v[40:43], v8, s[64:65]"); A("global_load_dwordx4 v[44:47], v8, s[64:65] offset:16")
A("s_lshr_b32 s26, s21, 3"); A("s_and_b32 s27, s21, 7"); A("s_lshl_b32 s28, s20, 3"); A("s_add_u32 s27, s27, s28")
A("v_lshrrev_b32 v9, 3, v2"); A("v_and_b32 v10, 7, v2"); A("v_lshlrev_b32 v11, 13, v9"); A("v_lshl_add_u32 v11, v10, 4, v11")
A("s_lshl_b32 s32, s26, 7"); A("s_lshl_b32 s33, s31, 5"); A("s_add_u32 s32, s32, s33"); A("s_lshl_b32 s32, s32, 13")
A("s_lshl_b32 s33, s27, 7"); A("s_add_u32 s32, s32, s33")
A("s_lshl_b32 s34, s31, 12"); A(f"s_add_u32 s35, s34, {LWQ}")
for n in range(4):
    A(f"s_add_u32 m0, s35, {n*1024}"); A(f"s_add_u32 s33, s32, {n*8*8192}")
    A("buffer_load_dwordx4 v11, s[40:43], s33 offen nt lds")
A("s_mul_i32 s28, s20, 14"); A("s_add_u32 s28, s28, s21"); A("s_lshr_b32 s29, s28, 2"); A("s_and_b32 s28, s28, 3")
A("s_cmp_ge_u32 s21, 14"); A("s_cbranch_scc1 L_now1")
A("v_mul_u32_u24 v11, 3584, v9"); A("v_lshl_add_u32 v11, v10, 4, v11")
A("s_lshl_b32 s32, s28, 7"); A("s_lshl_b32 s33, s31, 5"); A("s_add_u32 s32, s32, s33"); A("s_mul_i32 s32, s32, 3584")
A("s_lshl_b32 s33, s29, 7"); A("s_add_u32 s32, s32, s33")
A(f"s_add_u32 s35, s34, {LW1}")
for n in range(4):
    A(f"s_add_u32 m0, s35, {n*1024}"); A(f"s_add_u32 s33, s32, {n*8*3584}")
    A("buffer_load_dwordx4 v11, s[48:51], s33 offen nt lds")
LB("L_now1")
A("v_mov_b32 v60, 0")
A("global_load_dword v61, v60, s[86:87] sc1")
for i in range(4): A(f"v_mov_b32 v{12+i}, -1")
A("v_lshlrev_b32 v16, 4, v2")
A("s_cmp_eq_u32 s31, 0"); A("s_cbranch_scc0 L_cl1")
A(f"s_lshl_b32 s32, s2, 12"); A(f"s_add_u32 s32, s32, {WOB}"); A("v_add_u32 v17, s32, v16")
A("global_store_dwordx4 v17, v[12:15], s[88:89] sc1"); A("global_store_dwordx4 v17, v[12:15], s[88:89] offset:1024 sc1")
A("s_mov_b64 exec, 0xf"); A("global_store_dwordx4 v17, v[12:15], s[88:89] offset:2048 sc1"); A("s_mov_b64 exec, -1")
A("s_branch L_cldone")
LB("L_cl1")
A("s_cmp_eq_u32 s31, 3"); A("s_cbranch_scc1 L_cl3")
A(f"s_lshl_b32 s32, s2, 12"); A("s_sub_u32 s33, s31, 1"); A("s_lshl_b32 s33, s33, 11"); A("s_add_u32 s32, s32, s33"); A(f"s_add_u32 s32, s32, {WSB}"); A("v_add_u32 v17, s32, v16")
A("global_store_dwordx4 v17, v[12:15], s[88:89] sc1"); A("global_store_dwordx4 v17, v[12:15], s[88:89] offset:1024 sc1")
A("s_branch L_cldone")
LB("L_cl3")
A(f"s_lshl_b32 s32, s2, 11"); A(f"s_add_u32 s32, s32, {WYB}"); A("v_add_u32 v17, s32, v16")
A("global_store_dwordx4 v17, v[12:15], s[88:89] sc1"); A("global_store_dwordx4 v17, v[12:15], s[88:89] offset:1024 sc1")
LB("L_cldone")
for i in range(4): A(f"v_mov_b32 v{12+i}, 0")
A("v_lshrrev_b32 v17, 5, v2"); A("s_lshl_b32 s32, s31, 1"); A("v_add_u32 v17, s32, v17"); A("v_lshlrev_b32 v17, 15, v17")
A("v_and_b32 v18, 31, v2"); A("v_lshl_add_u32 v17, v18, 4, v17")
A(f"s_lshl_b32 s32, s26, 18"); A("s_lshl_b32 s33, s27, 9"); A("s_add_u32 s32, s32, s33"); A(f"s_add_u32 s32, s32, {WQP}"); A("v_add_u32 v19, s32, v17")
A("global_store_dwordx4 v19, v[12:15], s[88:89] sc1")
A("s_cmp_ge_u32 s21, 14"); A("s_cbranch_scc1 L_pt2")
A("v_lshrrev_b32 v17, 5, v2"); A("s_lshl_b32 s32, s31, 1"); A("v_add_u32 v17, s32, v17"); A("v_mul_u32_u24 v17, 14336, v17")
A("v_lshl_add_u32 v17, v18, 4, v17")
A(f"s_mul_i32 s32, s28, {8*14336}"); A("s_lshl_b32 s33, s29, 9"); A("s_add_u32 s32, s32, s33"); A(f"s_add_u32 s32, s32, {WHP}"); A("v_add_u32 v19, s32, v17")
A("global_store_dwordx4 v19, v[12:15], s[88:89] sc1")
LB("L_pt2")
A("s_cmp_lg_u32 s31, 0"); A("s_cbranch_scc1 L_n1")
A("ds_write_b128 v125, v[12:15]"); A("ds_write_b64 v125, v[12:13] offset:16")
LB("L_n1")
A("s_waitcnt lgkmcnt(0)")
A("s_barrier")
C("LN")
A("s_waitcnt vmcnt(0)")
stamp(1)
for i in range(8):
    A(f"v_lshlrev_b32 v{16+2*i}, 16, v{40+i}"); A(f"v_and_b32 v{17+2*i}, 0xffff0000, v{40+i}")
A("v_add_f32 v32, v16, v17")
for i in range(2, 16): A(f"v_add_f32 v32, v32, v{16+i}")
allred32(32, 33)
A("v_mul_f32 v32, 0x3b000000, v32")
A("v_sub_f32 v34, v16, v32"); A("v_mul_f32 v33, v34, v34")
for i in range(1, 16):
    A(f"v_sub_f32 v34, v{16+i}, v32"); A("v_fmac_f32 v33, v34, v34")
allred32(33, 34)
A("v_mul_f32 v33, 0x3b000000, v33")
rnd1(32); rnd1(33)
A("v_add_f32 v33, 0x3727c5ac, v33"); rnd1(33)
A("v_sqrt_f32 v33, v33"); nop(1); rnd1(33)
A("v_rcp_f32 v33, v33"); nop(1)
for i in range(0, 16, 2):
    a, b = 16+i, 17+i
    A(f"v_sub_f32 v{a}, v{a}, v32"); A(f"v_sub_f32 v{b}, v{b}, v32")
    A(f"v_cvt_pk_bf16_f32 v34, v{a}, v{b}")
    A(f"v_lshlrev_b32 v{a}, 16, v34"); A(f"v_and_b32 v{b}, 0xffff0000, v34")
    A(f"v_mul_f32 v{a}, v{a}, v33"); A(f"v_mul_f32 v{b}, v{b}, v33")
    A(f"v_cvt_pk_bf16_f32 v{40+i//2}, v{a}, v{b}")
A(f"v_mul_u32_u24 v8, {XNP}, v7"); A("v_lshl_add_u32 v8, v6, 5, v8"); A(f"v_add_u32 v8, {LXN}, v8")
A("ds_write_b128 v8, v[40:43]"); A("ds_write_b128 v8, v[44:47] offset:16")
A("v_mov_b32 v13, 0"); A("v_mov_b32 v12, v61")
A("v_cmp_ne_u32 vcc, 0, v12"); A("s_cbranch_vccnz L_pn_done")
spin_head("L_pn")
A("global_load_dword v12, v13, s[86:87] sc1"); A("s_waitcnt vmcnt(0)")
A("v_cmp_eq_u32 vcc, 0, v12")
spin_tail("L_pn", "L_pn_done", sleep=1)
A("v_readfirstlane_b32 s95, v12")
cbar()
A("s_cmp_lg_u32 s31, 3"); A("s_cbranch_scc1 L_nf")
A("v_mov_b32 v12, 1"); A("v_mov_b32 v13, s95"); A(f"s_lshl_b32 s32, s2, 3"); A(f"s_add_u32 s32, s32, {WFL}"); A("v_mov_b32 v14, s32")
A("s_mov_b64 exec, 1"); A("global_store_dwordx2 v14, v[12:13], s[88:89] sc1"); A("s_mov_b64 exec, -1")
LB("L_nf")
stamp(2)
C("jobs")
def job(lw, skg, wsbase, rowpitch, scg):
    A("v_and_b32 v5, 7, v3"); A(f"v_mul_u32_u24 v5, {XNP}, v5"); A("v_lshl_add_u32 v5, v4, 4, v5")
    A(f"s_lshl_b32 s32, s{skg}, 8"); A(f"s_add_u32 s32, s32, {LXN}"); A("v_add_u32 v5, s32, v5")
    for s in range(4): A(f"ds_read_b128 v[{16+4*s}:{19+4*s}], v5 offset:{s*64}")
    A("v_lshrrev_b32 v6, 2, v3"); A("v_lshl_add_u32 v6, v4, 3, v6"); A("v_lshlrev_b32 v6, 7, v6")
    A("v_and_b32 v7, 3, v3"); A("v_lshl_add_u32 v6, v7, 3, v6")
    A("s_lshl_b32 s32, s31, 5"); A(f"s_add_u32 s32, s32, {lw}"); A("v_add_u32 v6, s32, v6")
    for s in range(4):
        A(f"ds_read_b64_tr_b16 v[{32+4*s}:{33+4*s}], v6 offset:{s*4096}")
        A(f"ds_read_b64_tr_b16 v[{34+4*s}:{35+4*s}], v6 offset:{s*4096+512}")
    for i in range(4): A(f"v_mov_b32 v{48+i}, 0")
    for r in range(4): A(f"v_mov_b32 v{53+2*r}, s95")
    A(f"v_mul_u32_u24 v7, {4*rowpitch}, v4"); A("v_lshl_add_u32 v7, v3, 3, v7")
    A(f"s_mul_i32 s32, s{skg}, {8*rowpitch}"); A(f"s_lshl_b32 s33, s{scg}, 9"); A("s_add_u32 s32, s32, s33"); A("s_lshl_b32 s33, s31, 7"); A("s_add_u32 s32, s32, s33")
    A(f"s_add_u32 s32, s32, {wsbase}"); A("v_add_u32 v7, s32, v7")
    A("s_waitcnt lgkmcnt(0)")
    for s in range(4):
        A(f"v_mfma_f32_16x16x32_bf16 v[48:51], v[{16+4*s}:{19+4*s}], v[{32+4*s}:{35+4*s}], v[48:51]")
    nop(10)
    for r in range(4): A(f"v_mov_b32 v{52+2*r}, v{48+r}")
    A("v_cmp_gt_u32 vcc, 32, v2"); A("s_and_saveexec_b64 s[36:37], vcc")
    for r in range(4):
        A(f"v_add_u32 v8, {r*rowpitch}, v7"); A(f"global_store_dwordx2 v8, v[{52+2*r}:{53+2*r}], s[88:89] sc1")
    A("s_mov_b64 exec, s[36:37]")
job(LWQ, 26, WQP, 32768, 27)
A("s_cmp_ge_u32 s21, 14"); A("s_cbranch_scc1 L_noh")
job(LW1, 28, WHP, 14336, 29)
LB("L_noh")
stamp(3)
A("s_cmp_ge_u32 s31, 2"); A("s_cbranch_scc1 L_hg")
C("q gather (waves 0,1): sentinel then full")
A("v_and_b32 v5, 31, v2"); A("v_lshrrev_b32 v6, 3, v5"); A("v_and_b32 v7, 7, v5")
A("v_lshlrev_b32 v6, 18, v6"); A("v_lshl_add_u32 v6, v7, 9, v6")
A(f"s_lshl_b32 s32, s22, 15"); A("s_lshl_b32 s33, s20, 12"); A("s_add_u32 s32, s32, s33"); A(f"s_add_u32 s32, s32, {WQP}")
A("s_lshl_b32 s33, s31, 8"); A("s_add_u32 s33, s33, s32"); A("s_add_u32 s33, s33, 248"); A("v_add_u32 v6, s33, v6")
spin_head("L_sq")
A("global_load_dwordx2 v[16:17], v6, s[88:89] sc1"); A("s_waitcnt vmcnt(0)")
A("v_cmp_ne_u32 vcc, s95, v17")
spin_tail("L_sq", "L_sq_done", sleep=2)
A("s_lshl_b32 s33, s31, 6"); A("v_add_u32 v5, s33, v2")
A("v_lshlrev_b32 v6, 5, v5"); A("v_add_u32 v6, s32, v6")
for kg in range(1, 4): A(f"v_add_u32 v{8+kg}, {kg*262144}, v6")
A("v_mov_b32 v8, v6")
spin_head("L_pq")
for kg in range(4):
    A(f"global_load_dwordx4 v[{16+8*kg}:{19+8*kg}], v{8+kg}, s[88:89] sc1")
    A(f"global_load_dwordx4 v[{20+8*kg}:{23+8*kg}], v{8+kg}, s[88:89] offset:16 sc1")
A("s_waitcnt vmcnt(0)")
chk_tags([17+2*i for i in range(16)])
spin_tail("L_pq", "L_pq_done", sleep=2)
for i in range(4):
    A(f"v_add_f32 v{16+2*i}, v{16+2*i}, v{24+2*i}"); A(f"v_add_f32 v{32+2*i}, v{32+2*i}, v{40+2*i}"); A(f"v_add_f32 v{16+2*i}, v{16+2*i}, v{32+2*i}")
A("v_cvt_pk_bf16_f32 v24, v16, v18"); A("v_cvt_pk_bf16_f32 v25, v20, v22")
A("v_lshlrev_b32 v6, 3, v5"); A(f"v_add_u32 v6, {LQ}, v6"); A("ds_write_b64 v6, v[24:25]")
A("s_branch L_gd")
LB("L_hg")
C("h gather (waves 2,3)")
A("v_and_b32 v5, 3, v2"); A("v_mul_u32_u24 v5, 114688, v5"); A("v_bfe_u32 v6, v2, 2, 1"); A("v_mul_u32_u24 v6, 440, v6"); A("v_add_u32 v5, v5, v6")
A("s_mul_i32 s32, s21, 448"); A(f"s_add_u32 s32, s32, {WHP + 7*14336}"); A("v_add_u32 v5, s32, v5")
spin_head("L_sh")
A("global_load_dwordx2 v[16:17], v5, s[88:89] sc1"); A("s_waitcnt vmcnt(0)")
A("v_cmp_ne_u32 vcc, s95, v17")
spin_tail("L_sh", "L_sh_done", sleep=2)
A("s_sub_u32 s32, s31, 2"); A("s_lshl_b32 s32, s32, 6"); A("v_add_u32 v5, s32, v2")
A("v_lshrrev_b32 v6, 4, v5"); A("v_and_b32 v7, 15, v5")
A("v_min_u32 v8, 13, v7")
A("v_mul_u32_u24 v9, 14336, v6"); A("v_lshl_add_u32 v9, v8, 5, v9")
A("s_mul_i32 s32, s21, 448"); A(f"s_add_u32 s32, s32, {WHP}"); A("v_add_u32 v9, s32, v9")
A("s_mul_i32 s32, s21, 112"); A("v_lshlrev_b32 v10, 3, v8"); A("v_add_u32 v10, s32, v10")
A("global_load_dwordx2 v[52:53], v10, s[78:79]")
for kg in range(4): A(f"v_add_u32 v{10+kg}, {kg*8*14336}, v9")
spin_head("L_ph")
for kg in range(4):
    A(f"global_load_dwordx4 v[{16+8*kg}:{19+8*kg}], v{10+kg}, s[88:89] sc1")
    A(f"global_load_dwordx4 v[{20+8*kg}:{23+8*kg}], v{10+kg}, s[88:89] offset:16 sc1")
A("s_waitcnt vmcnt(0)")
chk_tags([17+2*i for i in range(16)])
spin_tail("L_ph", "L_ph_done", sleep=2)
for i in range(4):
    A(f"v_add_f32 v{16+2*i}, v{16+2*i}, v{24+2*i}"); A(f"v_add_f32 v{32+2*i}, v{32+2*i}, v{40+2*i}"); A(f"v_add_f32 v{16+i}, v{16+2*i}, v{32+2*i}")
    rnd1(16+i)
A("v_lshlrev_b32 v20, 16, v52"); A("v_and_b32 v21, 0xffff0000, v52"); A("v_lshlrev_b32 v22, 16, v53"); A("v_and_b32 v23, 0xffff0000, v53")
A("s_mov_b32 s32, 0x3d372713"); A("s_mov_b32 s33, 0x40135761")
for i in range(4):
    x = 16+i
    A(f"v_add_f32 v{x}, v{x}, v{20+i}"); rnd1(x)
    A(f"v_mul_f32 v24, v{x}, v{x}"); A(f"v_mul_f32 v24, s32, v24"); A(f"v_fma_f32 v24, v24, v{x}, v{x}")
    A(f"v_mul_f32 v24, s33, v24"); A("v_exp_f32 v24, v24"); nop(1)
    A("v_add_f32 v24, 1.0, v24"); A("v_rcp_f32 v24, v24"); nop(1)
    A("v_fma_f32 v24, v24, -2.0, 1.0")
    A("v_add_f32 v24, 1.0, v24"); A(f"v_mul_f32 v24, v24, v{x}"); A(f"v_mul_f32 v{x}, 0.5, v24")
A("v_cvt_pk_bf16_f32 v20, v16, v17"); A("v_cvt_pk_bf16_f32 v21, v18, v19")
A("v_cmp_gt_u32 vcc, 14, v7"); nop(2); A("v_cndmask_b32 v20, 0, v20, vcc"); A("v_cndmask_b32 v21, 0, v21, vcc")
A(f"v_mul_u32_u24 v9, {HPITCH}, v6"); A("v_lshl_add_u32 v9, v7, 3, v9"); A(f"v_add_u32 v9, {LH}, v9")
A("ds_write_b64 v9, v[20:21]")
LB("L_gd")
stamp(4)
cbar()
stamp(5)
C("S phase: control wave cw handles keys [64cw, +64) = bulk chunks w = 2cw, 2cw+1 ; tiles tt=0..3 (w = 2cw + (tt>>1), t = tt&1)")
lds_wait(16, 8)
stamp(6)
A("v_and_b32 v5, 3, v3"); A("v_lshlrev_b32 v5, 2, v5"); A("v_lshrrev_b32 v6, 2, v3"); A("v_or_b32 v5, v5, v6")
A("v_lshlrev_b32 v6, 8, v5"); A("s_lshl_b32 s32, s31, 14"); A("v_add_u32 v6, s32, v6")
for s in range(4):
    A(f"v_add_u32 v7, {4*s}, v4"); A("v_xor_b32 v7, v7, v5"); A(f"v_lshl_add_u32 v{8+s}, v7, 4, v6")
for tt in range(4):
    for s in range(4):
        A(f"ds_read_b128 v[{16+16*tt+4*s}:{19+16*tt+4*s}], v{8+s} offset:{tt*4096}")
A("v_and_b32 v7, 3, v3"); A("v_lshlrev_b32 v7, 8, v7"); A(f"v_lshl_add_u32 v7, v4, 4, v7"); A(f"v_add_u32 v7, {LQ}, v7")
for s in range(4): A(f"ds_read_b128 v[{80+4*s}:{83+4*s}], v7 offset:{s*64}")
for i in range(16): A(f"v_mov_b32 v{96+i}, 0")
A("s_waitcnt lgkmcnt(0)")
for s in range(4):
    for tt in range(4):
        a = 96 + 4*tt
        A(f"v_mfma_f32_16x16x32_bf16 v[{a}:{a+3}], v[{16+16*tt+4*s}:{19+16*tt+4*s}], v[{80+4*s}:{83+4*s}], v[{a}:{a+3}]")
nop(10)
A("s_mov_b32 s34, 0x3db504f3")
for i in range(0, 16, 2):
    a, b = 96+i, 97+i
    A(f"v_cvt_pk_bf16_f32 v8, v{a}, v{b}")
    A(f"v_lshlrev_b32 v{a}, 16, v8"); A(f"v_and_b32 v{b}, 0xffff0000, v8")
    A(f"v_mul_f32 v{a}, s34, v{a}"); A(f"v_mul_f32 v{b}, s34, v{b}")
    A(f"v_cvt_pk_bf16_f32 v8, v{a}, v{b}")
    A(f"v_lshlrev_b32 v{a}, 16, v8"); A(f"v_and_b32 v{b}, 0xffff0000, v8")
A("v_max3_f32 v112, v96, v97, v98")
for i in range(99, 111, 2): A(f"v_max3_f32 v112, v112, v{i}, v{i+1}")
A("v_max_f32 v112, v112, v111")
red_g(112, 8, "v_max_f32")
A("v_and_b32 v7, 3, v3"); A("v_lshlrev_b32 v7, 4, v7")
A("s_lshl_b32 s33, s31, 2"); A(f"s_add_u32 s33, s33, {LMX}"); A("v_add_u32 v9, s33, v7")
A("ds_write_b32 v9, v112")
cbar()
A(f"v_add_u32 v9, {LMX}, v7"); A("ds_read_b128 v[16:19], v9"); A("s_waitcnt lgkmcnt(0)")
A("v_max3_f32 v112, v16, v17, v18"); A("v_max_f32 v112, v112, v19")
A("s_mov_b32 s34, 0x3fb8aa3b")
for i in range(16):
    a = 96 + i
    A(f"v_sub_f32 v{a}, v{a}, v112"); A(f"v_mul_f32 v{a}, s34, v{a}"); A(f"v_exp_f32 v{a}, v{a}")
nop(1)
A("v_add_f32 v113, v96, v97")
for i in range(98, 112): A(f"v_add_f32 v113, v113, v{i}")
red_g(113, 8, "v_add_f32")
A("s_lshl_b32 s33, s31, 2"); A(f"s_add_u32 s33, s33, {LLS}"); A("v_add_u32 v9, s33, v7")
A("ds_write_b32 v9, v113")
for i in range(16): A(f"v_cvt_pk_bf16_f32 v{96+i}, v{96+i}, v{96+i}")
A("v_and_b32 v7, 3, v3"); A("v_lshlrev_b32 v7, 7, v7"); A("v_lshl_add_u32 v7, v4, 5, v7")
A("s_lshl_b32 s33, s31, 10"); A(f"s_add_u32 s33, s33, {LP}"); A("v_add_u32 v7, s33, v7")
A("v_cmp_gt_u32 vcc, 4, v3"); A("s_and_saveexec_b64 s[36:37], vcc")
for tt in range(4):
    A(f"ds_write_b128 v7, v[{96+4*tt}:{99+4*tt}] offset:{(tt>>1)*512 + (tt&1)*16}")
A("s_mov_b64 exec, s[36:37]")
lds_inc(20)
stamp(7)
C("wave 1: flags")
A("s_cmp_lg_u32 s31, 1"); A("s_cbranch_scc1 L_nfl")
A(f"v_lshlrev_b32 v7, 5, v2"); A(f"v_add_u32 v7, {WFL}, v7")
spin_head("L_pfl")
A("global_load_dwordx4 v[16:19], v7, s[88:89] sc1"); A("global_load_dwordx4 v[20:23], v7, s[88:89] offset:16 sc1"); A("s_waitcnt vmcnt(0)")
chk_tags([17, 19, 21, 23])
spin_tail("L_pfl", "L_pfl_done", sleep=2)
A("v_mov_b32 v16, 1"); A("ds_write_b32 v125, v16 offset:12")
LB("L_nfl")
C("FFN2 (W2 landed: K-landed counter covers ops 0..8)")
A("v_and_b32 v5, 7, v3"); A(f"v_mul_u32_u24 v5, {HPITCH}, v5"); A("v_lshl_add_u32 v5, v4, 4, v5"); A(f"v_add_u32 v5, {LH}, v5")
A("ds_read_b128 v[16:19], v5"); A("ds_read_b128 v[20:23], v5 offset:64")
A("v_lshrrev_b32 v6, 2, v3"); A("v_lshl_add_u32 v6, v4, 3, v6"); A("v_lshlrev_b32 v6, 7, v6")
A("v_and_b32 v7, 3, v3"); A("v_lshl_add_u32 v6, v7, 3, v6")
A("s_lshl_b32 s32, s31, 5"); A(f"s_add_u32 s32, s32, {LW2}"); A("v_add_u32 v6, s32, v6")
for s in range(2):
    A(f"ds_read_b64_tr_b16 v[{32+4*s}:{33+4*s}], v6 offset:{s*4096}")
    A(f"ds_read_b64_tr_b16 v[{34+4*s}:{35+4*s}], v6 offset:{s*4096+512}")
for i in range(4): A(f"v_mov_b32 v{48+i}, 0")
A("v_lshlrev_b32 v7, 10, v4"); A("v_lshl_add_u32 v7, v3, 2, v7")
A("s_lshl_b32 s32, s2, 11"); A("s_lshl_b32 s33, s31, 6"); A("s_add_u32 s32, s32, s33"); A(f"s_add_u32 s32, s32, {WYB}"); A("v_add_u32 v7, s32, v7")
A("s_waitcnt lgkmcnt(0)")
A("v_mfma_f32_16x16x32_bf16 v[48:51], v[16:19], v[32:35], v[48:51]")
A("v_mfma_f32_16x16x32_bf16 v[48:51], v[20:23], v[36:39], v[48:51]")
nop(10)
for r in range(4): guard(48+r)
A("v_cmp_gt_u32 vcc, 32, v2"); A("s_and_saveexec_b64 s[36:37], vcc")
for r in range(4): A(f"global_store_dword v7, v{48+r}, s[88:89] offset:{r*256} sc1")
A("s_mov_b64 exec, s[36:37]")
A("s_cmp_lg_u32 s31, 0"); A("s_cbranch_scc1 L_end")
C("wave 0: y -> g, then final")
lds_wait(12, 1)
A("v_lshrrev_b32 v5, 2, v2"); A("v_and_b32 v6, 3, v2")
A("v_lshlrev_b32 v7, 14, v5"); A("v_lshl_add_u32 v7, v6, 4, v7")
A("s_lshl_b32 s32, s20, 11"); A("s_lshl_b32 s33, s22, 8"); A("s_add_u32 s32, s32, s33"); A("s_lshl_b32 s33, s23, 6"); A("s_add_u32 s32, s32, s33"); A(f"s_add_u32 s32, s32, {WYB}")
A("v_add_u32 v7, s32, v7"); A("v_add_u32 v8, 0x40000, v7")
A("s_lshl_b32 s32, s20, 7"); A("s_lshl_b32 s33, s23, 5"); A("s_add_u32 s32, s32, s33"); A("v_lshlrev_b32 v9, 3, v6"); A("v_add_u32 v9, s32, v9")
A("global_load_dwordx2 v[100:101], v9, s[82:83]")
A("s_lshl_b32 s33, s22, 10"); A("v_add_u32 v10, s33, v9")
A("global_load_dwordx2 v[102:103], v10, s[64:65]")
def red16(regs):
    for r in regs: dpp_add(r, "row_shr:4")
    for r in regs: dpp_add(r, "row_shr:8")
    for r in regs: red_g(r, 11, "v_add_f32")
spin_head("L_py")
A("global_load_dwordx4 v[16:19], v7, s[88:89] sc1"); A("global_load_dwordx4 v[20:23], v8, s[88:89] sc1"); A("s_waitcnt vmcnt(0)")
chk_empty(list(range(16, 24)))
spin_tail("L_py", "L_py_done", sleep=2)
stamp(8)
for i in range(4): A(f"v_add_f32 v{104+i}, v{16+i}, v{20+i}")
red16([104, 105, 106, 107])
A("v_lshlrev_b32 v20, 16, v100"); A("v_and_b32 v21, 0xffff0000, v100"); A("v_lshlrev_b32 v22, 16, v101"); A("v_and_b32 v23, 0xffff0000, v101")
for i in range(4):
    x = 104+i
    rnd1(x); A(f"v_add_f32 v{x}, v{x}, v{20+i}"); rnd1(x)
    A(f"v_mul_f32 v24, 0xbfb8aa3b, v{x}"); A("v_exp_f32 v24, v24"); nop(1); A("v_add_f32 v24, 1.0, v24"); A("v_rcp_f32 v24, v24"); nop(1)
    A(f"v_mul_f32 v{x}, v{x}, v24"); rnd1(x)
A("v_and_b32 v7, 7, v5"); A("v_lshrrev_b32 v8, 3, v5"); A("v_lshl_add_u32 v7, v8, 5, v7")
A("v_lshlrev_b32 v7, 12, v7"); A("v_lshl_add_u32 v7, v6, 4, v7")
A("s_lshr_b32 s32, s20, 1"); A("s_lshl_b32 s32, s32, 15")
A("s_lshl_b32 s33, s22, 9"); A("s_add_u32 s32, s32, s33")
A("s_and_b32 s33, s20, 1"); A("s_lshl_b32 s33, s33, 2"); A("s_add_u32 s33, s33, s23"); A("s_lshl_b32 s33, s33, 6"); A("s_add_u32 s32, s32, s33")
A(f"s_add_u32 s32, s32, {WSB}"); A("v_add_u32 v108, s32, v7")
for i in range(1, 4): A(f"v_add_u32 v{108+i}, {i*64*4096}, v108")
stamp(9)
spin_head("L_pz")
for i in range(4): A(f"global_load_dwordx4 v[{16+4*i}:{19+4*i}], v{108+i}, s[88:89] sc1")
A("s_waitcnt vmcnt(0)")
chk_empty(list(range(16, 32)))
spin_tail("L_pz", "L_pz_done", sleep=1)
stamp(11)
for i in range(4):
    A(f"v_add_f32 v{16+i}, v{16+i}, v{20+i}"); A(f"v_add_f32 v{24+i}, v{24+i}, v{28+i}"); A(f"v_add_f32 v{112+i}, v{16+i}, v{24+i}")
red16([112, 113, 114, 115])
A("v_lshlrev_b32 v20, 16, v102"); A("v_and_b32 v21, 0xffff0000, v102"); A("v_lshlrev_b32 v22, 16, v103"); A("v_and_b32 v23, 0xffff0000, v103")
for i in range(4):
    x = 112+i
    rnd1(x); A(f"v_mul_f32 v{x}, v{x}, v{104+i}"); rnd1(x); A(f"v_add_f32 v{x}, v{x}, v{20+i}")
A("v_cvt_pk_bf16_f32 v28, v112, v113"); A("v_cvt_pk_bf16_f32 v29, v114, v115")
A("v_cmp_le_u32 vcc, 12, v2"); A("v_cmp_gt_u32 s[36:37], 16, v2"); A("s_and_b64 vcc, vcc, s[36:37]"); A("s_and_saveexec_b64 s[36:37], vcc")
A("global_store_dwordx2 v10, v[28:29], s[84:85]")
stamp(12)
stamp_flush(0)
LB("L_end")
A("s_endpgm")
L.append('.section .rodata,"a"')
L.append(".p2align 6")
L.append(f".amdhsa_kernel {NAME}_kernel")
L.append("  .amdhsa_next_free_vgpr 128"); L.append("  .amdhsa_next_free_sgpr 102"); L.append("  .amdhsa_accum_offset 128")
L.append("  .amdhsa_group_segment_fixed_size 0"); L.append("  .amdhsa_kernarg_size 104"); L.append("  .amdhsa_user_sgpr_count 2")
L.append("  .amdhsa_user_sgpr_kernarg_segment_ptr 1"); L.append("  .amdhsa_system_sgpr_workgroup_id_x 1")
L.append(".end_amdhsa_kernel")
out = [x for x in L if x is not None]
dst = [a for a in sys.argv[1:] if not a.startswith("--")]
open(dst[0] if dst else f"cdna_kernels/{NAME}.s", "w").write("\n".join(out) + "\n")
```

```python
import sys
NAME = "recurrent_scan__sliding_block_cached__dense_activation_gelu__decode"
STAMPS = "--stamps" in sys.argv
DEPTH = 2
for a in sys.argv:
    if a.startswith("--depth="): DEPTH = int(a.split("=")[1])
L = []
def A(s): L.append("    " + s)
def LB(s): L.append(s + ":")
def C(s): L.append("    ; " + s)

LK = 0; LWQ = 65536; LW1 = 81920; LWO = 98304; LW2 = 114688; LXN = 122880; XNP = 1040
LQ = 131328; LH = 132352; HPITCH = 144; LO = 133504; LMX = 134656; LLS = 134784; LSY = 134912
LP = 135168
LORED = 65536
LDS_TOTAL = 139264
WQP = 0x0; WHP = 0x100000; WOB = 0x200000; WSB = 0x400000; WYB = 0x600000; WFL = 0x700000; WTM = 0x800000
SPIN = 200000

def nop(n):
    while n > 0:
        k = min(n, 16); A(f"s_nop {k-1}"); n -= k
def stamp(k):
    if not STAMPS: return
    A("s_memrealtime s[98:99]"); A("s_waitcnt lgkmcnt(0)")
    A(f"v_writelane_b32 v126, s98, {k}")
def stamp_flush(base):
    if not STAMPS: return
    A("s_mov_b64 exec, -1")
    A(f"s_lshl_b32 s97, s2, 9"); A(f"s_add_u32 s97, s97, {WTM + base}")
    A("v_lshlrev_b32 v127, 2, v2"); A("v_add_u32 v127, s97, v127")
    A("global_store_dword v127, v126, s[88:89]")
def srd(d, p, n):
    A(f"s_mov_b32 s{d}, s{p}"); A(f"s_mov_b32 s{d+1}, s{p+1}"); A(f"s_mov_b32 s{d+2}, {hex(n)}"); A(f"s_mov_b32 s{d+3}, 0x20000")
def dpp_add(v, ctrl, op="v_add_f32"):
    nop(2)
    bc = " bound_ctrl:0" if "shr" in ctrl else ""
    A(f"{op}_dpp v{v}, v{v}, v{v} {ctrl} row_mask:0xf bank_mask:0xf{bc}")
def allred32(v, t, op="v_add_f32"):
    dpp_add(v, "quad_perm:[1,0,3,2]", op); dpp_add(v, "quad_perm:[2,3,0,1]", op)
    dpp_add(v, "row_half_mirror", op); dpp_add(v, "row_mirror", op)
    A(f"v_mov_b32 v{t}, v{v}"); nop(2)
    A(f"v_permlane16_swap_b32 v{v}, v{t}"); nop(1)
    A(f"{op} v{v}, v{v}, v{t}")
def red_g(v, t, op):
    A(f"v_mov_b32 v{t}, v{v}"); nop(2)
    A(f"v_permlane16_swap_b32 v{v}, v{t}"); nop(1)
    A(f"{op} v{v}, v{v}, v{t}")
    A(f"v_mov_b32 v{t}, v{v}"); nop(2)
    A(f"v_permlane32_swap_b32 v{v}, v{t}"); nop(1)
    A(f"{op} v{v}, v{v}, v{t}")
def rnd1(v):
    A(f"v_cvt_pk_bf16_f32 v{v}, v{v}, v{v}"); A(f"v_lshlrev_b32 v{v}, 16, v{v}")
def spin_head(lbl):
    A("s_mov_b32 s96, 0"); LB(lbl)
def spin_tail(lbl, done, sleep=0):
    A(f"s_cbranch_vccz {done}")
    if sleep: A(f"s_sleep {sleep}")
    A("s_add_u32 s96, s96, 1"); A(f"s_cmp_lt_u32 s96, {SPIN}"); A(f"s_cbranch_scc1 {lbl}")
    LB(done)
def chk(regs, cmp, val):
    for i, r in enumerate(regs):
        if i == 0: A(f"v_cmp_{cmp}_u32 s[38:39], {val}, v{r}")
        else:
            A(f"v_cmp_{cmp}_u32 vcc, {val}, v{r}"); A("s_or_b64 s[38:39], s[38:39], vcc")
    A("s_mov_b64 vcc, s[38:39]")
def chk_tags(regs): chk(regs, "ne", "s95")
def chk_empty(regs): chk(regs, "eq", "-1")
def guard(v):
    A(f"v_cmp_eq_u32 vcc, -1, v{v}"); nop(2)
    A(f"v_cndmask_b32 v{v}, v{v}, v124, vcc")
_n = [0]
def lds_inc(off):
    A("s_waitcnt lgkmcnt(0)")
    A("v_mov_b32 v123, 1")
    A("s_mov_b64 s[36:37], exec"); A("s_mov_b64 exec, 1")
    A(f"ds_add_u32 v125, v123 offset:{off}")
    A("s_mov_b64 exec, s[36:37]")
def lds_wait(off, val):
    _n[0] += 1; n = _n[0]
    spin_head(f"L_lw{n}")
    A(f"ds_read_b32 v123, v125 offset:{off}"); A("s_waitcnt lgkmcnt(0)")
    A(f"v_cmp_gt_u32 vcc, {val}, v123")
    spin_tail(f"L_lw{n}", f"L_lw{n}_d")
_cb = [0]; _bb = [0]
def cbar():
    _cb[0] += 1; lds_inc(0); lds_wait(0, 4*_cb[0])
def bbar():
    _bb[0] += 1; lds_inc(8); lds_wait(8, 8*_bb[0])

L.append(f"; @launch grid=(256,1,1) block=(768,1,1) lds={LDS_TOTAL}")
L.append('.amdgcn_target "amdgcn-amd-amdhsa--gfx950"')
L.append(".text")
L.append(f".globl {NAME}_kernel"); L.append(".p2align 8"); L.append(f".type {NAME}_kernel,@function")
LB(f"{NAME}_kernel")
A("s_cmp_ge_u32 s2, 256"); A("s_cbranch_scc1 L_end")
A("s_load_dwordx16 s[64:79], s[0:1], 0")
A("s_load_dwordx8 s[80:87], s[0:1], 64")
A("s_load_dwordx2 s[88:89], s[0:1], 96")
A("s_and_b32 s20, s2, 7"); A("s_lshr_b32 s21, s2, 3"); A("s_lshr_b32 s22, s21, 2"); A("s_and_b32 s23, s21, 3")
A("v_lshrrev_b32 v1, 6, v0"); A("v_and_b32 v2, 63, v0")
A("v_readfirstlane_b32 s30, v1")
A("s_lshl_b32 s24, s22, 3"); A("s_add_u32 s24, s24, s20"); A("s_lshl_b32 s24, s24, 20"); A("s_add_u32 s24, s24, 0xC0000")
A("s_lshl_b32 s25, s23, 16"); A("s_add_u32 s25, s25, s24")
A("v_and_b32 v3, 15, v2"); A("v_lshrrev_b32 v4, 4, v2")
A(f"v_mov_b32 v125, {LSY}"); A("v_mov_b32 v124, 0x7fc00000")
A("s_waitcnt lgkmcnt(0)")
A("s_cmp_ge_u32 s30, 8"); A("s_cbranch_scc1 L_ctrl")

C("bulk waves")
stamp(0)
srd(8, 66, 0x4000000); srd(12, 68, 0x4000000); srd(44, 72, 0x400000); srd(52, 80, 512*1792*2)
A("s_lshl_b32 s31, s30, 13")
A("s_add_u32 s26, s31, s25"); A("s_add_u32 s27, s26, 4096")
for nn in range(4):
    A(f"v_add_u32 v5, {4*nn}, v4"); A("v_xor_b32 v5, v5, v3"); A("v_lshlrev_b32 v5, 4, v5"); A(f"v_lshl_add_u32 v{6+nn}, v4, 8, v5")
A("v_lshrrev_b32 v10, 3, v2"); A("v_lshlrev_b32 v10, 10, v10"); A("v_and_b32 v11, 7, v2"); A("v_lshl_add_u32 v10, v11, 4, v10")
A("s_mul_i32 s32, s21, 56"); A("s_lshl_b32 s33, s30, 3"); A("s_add_u32 s32, s32, s33"); A("s_lshl_b32 s32, s32, 10")
A("s_lshl_b32 s33, s20, 7"); A("s_add_u32 s32, s32, s33")
A("s_lshl_b32 s33, s30, 10"); A(f"s_add_u32 s33, s33, {LW2}")
A("v_lshlrev_b32 v12, 4, v2"); A("v_add_u32 v12, s31, v12"); A("v_add_u32 v13, 4096, v12")
A("v_lshlrev_b32 v14, 10, v4"); A("v_lshl_add_u32 v14, v3, 4, v14")
A("s_lshl_b32 s34, s20, 9"); A("s_lshl_b32 s35, s22, 6"); A("s_add_u32 s34, s34, s35"); A("s_lshl_b32 s35, s30, 3"); A("s_add_u32 s34, s34, s35")
A("s_lshl_b32 s34, s34, 10"); A("s_lshl_b32 s35, s23, 8"); A("s_add_u32 s34, s34, s35")
A("s_lshl_b32 s35, s30, 11"); A(f"s_add_u32 s35, s35, {LWO}")
A("v_and_b32 v15, 7, v3"); A("v_and_b32 v16, 1, v15"); A("v_lshrrev_b32 v17, 1, v15")
A("v_mov_b32 v18, 0xffff"); A("v_mov_b32 v19, 0xffff0000")
A("v_cmp_eq_u32 vcc, 1, v16"); nop(2); A("v_cndmask_b32 v18, v18, v19, vcc")
for r in range(4):
    A(f"v_cmp_eq_u32 vcc, {r}, v17"); nop(2); A(f"v_cndmask_b32 v{112+r}, 0, v18, vcc")
ops = []
for n in range(8):
    def f(n=n):
        if n == 0: A("s_mov_b32 m0, s31"); nop(1)
        if n == 4: A("s_add_u32 m0, s31, 4096"); nop(1)
        A(f"buffer_load_dwordx4 v{6+(n&3)}, s[8:11], s{26 if n<4 else 27} offen offset:{(n&3)*1024} nt lds")
    ops.append(f)
def fw2():
    A("s_cmp_eq_u32 s30, 7"); A("s_cbranch_scc1 L_w2zero")
    A("s_mov_b32 m0, s33"); nop(1)
    A("buffer_load_dwordx4 v10, s[52:55], s32 offen nt lds")
    A("s_branch L_w2done")
    LB("L_w2zero")
    for i in range(4): A(f"v_mov_b32 v{116+i}, 0")
    A(f"v_lshlrev_b32 v11, 4, v2"); A(f"v_add_u32 v11, {LW2 + 7168}, v11")
    A("ds_write_b128 v11, v[116:119]")
    A("buffer_load_dwordx4 v[116:119], v10, s[52:55], 0 offen")
    LB("L_w2done")
ops.append(fw2)
for n in range(8):
    def f(n=n): A(f"buffer_load_dwordx4 v[{16+4*n}:{19+4*n}], v{12 if n<4 else 13}, s[12:15], s25 offen offset:{(n%4)*1024} nt")
    ops.append(f)
def fwo0():
    A("s_mov_b32 m0, s35"); nop(1); A("buffer_load_dwordx4 v14, s[44:47], s34 offen nt lds")
def fwo1():
    A("s_add_u32 m0, s35, 1024"); A("s_add_u32 s34, s34, 4096"); A("buffer_load_dwordx4 v14, s[44:47], s34 offen nt lds")
ops += [fwo0, fwo1]
A("s_barrier")
for i, f in enumerate(ops):
    if i >= DEPTH: A(f"s_waitcnt vmcnt({DEPTH-1})")
    if i == 9 + DEPTH - 0 and False: pass
    if i == 8 + DEPTH + 1 - 0: pass
    if i == 9 + DEPTH - 1 + 0 and False: pass
    if i == 8 + DEPTH:
        lds_inc(16); stamp(1)
    f()
C("wait P, build B operands")
lds_wait(20, 4)
stamp(2)
A("v_lshrrev_b32 v5, 3, v3"); A("v_lshlrev_b32 v5, 7, v5"); A("v_lshl_add_u32 v5, v4, 5, v5")
A("s_lshl_b32 s33, s30, 9"); A(f"s_add_u32 s33, s33, {LP}"); A("v_add_u32 v5, s33, v5")
A("ds_read_b128 v[80:83], v5"); A("ds_read_b128 v[84:87], v5 offset:16")
A("ds_read_b128 v[88:91], v5 offset:256"); A("ds_read_b128 v[92:95], v5 offset:272")
for i in range(8): A(f"v_mov_b32 v{96+i}, 0")
A("s_waitcnt lgkmcnt(0)")
stamp(3)
C("PV")
for i in range(8):
    base = 48 + (i & 3) * 8
    for hp in range(2):
        for q in range(4): A(f"v_and_b32 v{base+4*hp+q}, v{80+8*hp+i}, v{112+q}")
    A(f"s_waitcnt vmcnt({7-i+2})")
    for hp in range(2):
        A(f"v_mfma_f32_16x16x32_bf16 v[{96+4*hp}:{99+4*hp}], v[{16+4*i}:{19+4*i}], v[{base+4*hp}:{base+4*hp+3}], v[{96+4*hp}:{99+4*hp}]")
A("s_lshl_b32 s33, s30, 11"); A(f"s_add_u32 s33, s33, {LORED}"); A("v_lshlrev_b32 v9, 4, v2"); A("v_add_u32 v9, s33, v9")
nop(8)
A("ds_write_b128 v9, v[96:99]"); A("ds_write_b128 v9, v[100:103] offset:1024")
A("s_waitcnt vmcnt(0)")
stamp(4)
bbar()
stamp(5)
A("v_lshrrev_b32 v10, 2, v3"); A("v_lshl_add_u32 v10, v4, 3, v10"); A("v_lshlrev_b32 v10, 8, v10")
A("v_and_b32 v11, 3, v3"); A("v_lshl_add_u32 v10, v11, 3, v10")
A("s_lshl_b32 s33, s30, 5"); A(f"s_add_u32 s33, s33, {LWO}"); A("v_add_u32 v10, s33, v10")
A("s_cmp_ge_u32 s30, 2"); A("s_cbranch_scc1 L_nored")
A("s_lshl_b32 s33, s30, 10"); A("v_lshlrev_b32 v9, 4, v2"); A("v_add_u32 v9, s33, v9")
A(f"v_add_u32 v5, {LORED}, v9")
for w in range(8): A(f"ds_read_b128 v[{48+4*w}:{51+4*w}], v5 offset:{w*2048}")
A(f"s_lshl_b32 s33, s2, 12"); A(f"s_add_u32 s33, s33, {WOB}"); A("v_add_u32 v9, s33, v9")
A("s_waitcnt lgkmcnt(0)")
for q in range(4):
    A(f"v_add_f32 v{48+q}, v{48+q}, v{52+q}"); A(f"v_add_f32 v{56+q}, v{56+q}, v{60+q}"); A(f"v_add_f32 v{64+q}, v{64+q}, v{68+q}"); A(f"v_add_f32 v{72+q}, v{72+q}, v{76+q}")
for q in range(4):
    A(f"v_add_f32 v{48+q}, v{48+q}, v{56+q}"); A(f"v_add_f32 v{64+q}, v{64+q}, v{72+q}")
for q in range(4): A(f"v_add_f32 v{48+q}, v{48+q}, v{64+q}")
for q in range(4): guard(48+q)
A("global_store_dwordx4 v9, v[48:51], s[88:89] sc1")
A("s_branch L_nostat")
LB("L_nored")
A("s_cmp_lg_u32 s30, 2"); A("s_cbranch_scc1 L_nostat")
A("v_and_b32 v15, 7, v2"); A("v_lshrrev_b32 v5, 1, v15"); A("v_lshlrev_b32 v5, 4, v5"); A("v_and_b32 v6, 1, v15"); A("v_lshl_add_u32 v5, v6, 7, v5"); A(f"v_add_u32 v5, {LMX}, v5")
A("ds_read_b128 v[56:59], v5"); A("s_waitcnt lgkmcnt(0)")
A("v_max3_f32 v8, v56, v57, v58"); A("v_max_f32 v8, v8, v59")
A("v_add_f32 v66, v56, v57"); A("v_add_f32 v66, v66, v58"); A("v_add_f32 v66, v66, v59")
A("v_cmp_eq_u32 vcc, 0, v6"); nop(2); A("v_cndmask_b32 v66, v66, v8, vcc")
guard(66)
A(f"s_lshl_b32 s33, s2, 12"); A(f"s_add_u32 s33, s33, {WOB + 2048}"); A(f"v_lshlrev_b32 v7, 2, v2"); A("v_add_u32 v7, s33, v7")
A("v_cmp_gt_u32 vcc, 8, v2"); A("s_and_saveexec_b64 s[36:37], vcc"); A("global_store_dword v7, v66, s[88:89] sc1"); A("s_mov_b64 exec, s[36:37]")
LB("L_nostat")
for s_ in range(2):
    A(f"ds_read_b64_tr_b16 v[{104+4*s_}:{105+4*s_}], v10 offset:{s_*8192}")
    A(f"ds_read_b64_tr_b16 v[{106+4*s_}:{107+4*s_}], v10 offset:{s_*8192+1024}")
C("combine")
A("s_lshl_b32 s33, s30, 5"); A("s_add_u32 s33, s33, s20"); A("s_lshl_b32 s33, s33, 12"); A(f"s_add_u32 s33, s33, {WOB}")
A("v_lshrrev_b32 v5, 5, v2"); A("v_lshlrev_b32 v5, 6, v5")
A("v_and_b32 v6, 7, v2"); A("v_lshl_add_u32 v5, v6, 2, v5")
A("v_bfe_u32 v6, v2, 3, 2"); A("v_add_u32 v5, v5, v6"); A("v_lshlrev_b32 v5, 2, v5")
A("s_lshr_b32 s34, s22, 2"); A("s_lshl_b32 s34, s34, 10")
A("s_and_b32 s35, s22, 1"); A("s_lshl_b32 s35, s35, 9"); A("s_add_u32 s34, s34, s35")
A("s_bfe_u32 s35, s22, 0x10001"); A("s_lshl_b32 s35, s35, 7"); A("s_add_u32 s34, s34, s35")
A("s_add_u32 s34, s34, s33"); A("v_add_u32 v5, s34, v5")
A("s_lshr_b32 s34, s22, 1"); A("s_lshl_b32 s34, s34, 3"); A("s_add_u32 s34, s34, s33"); A("s_add_u32 s34, s34, 2048"); A("v_mov_b32 v6, s34")
for c in range(1, 4):
    A(f"v_add_u32 v{68+c}, {c*0x8000}, v5"); A(f"v_add_u32 v{72+c}, {c*0x8000}, v6")
A("v_mov_b32 v68, v5"); A("v_mov_b32 v72, v6")
lds_wait(12, 1)
spin_head("L_po")
for c in range(4): A(f"global_load_dword v{48+c}, v{68+c}, s[88:89] sc1")
for c in range(4): A(f"global_load_dwordx2 v[{76+2*c}:{77+2*c}], v{72+c}, s[88:89] sc1")
A("s_waitcnt vmcnt(0)")
chk_empty([48, 49, 50, 51] + list(range(76, 84)))
spin_tail("L_po", "L_po_done")
stamp(6)
A("v_max3_f32 v8, v76, v78, v80"); A("v_max_f32 v8, v8, v82")
for c in range(4):
    m = 76+2*c
    A(f"v_sub_f32 v{m}, v{m}, v8"); A(f"v_mul_f32 v{m}, 0x3fb8aa3b, v{m}"); A(f"v_exp_f32 v{m}, v{m}")
nop(1)
A("v_mul_f32 v9, v76, v77"); A("v_fmac_f32 v9, v78, v79"); A("v_fmac_f32 v9, v80, v81"); A("v_fmac_f32 v9, v82, v83")
A("v_rcp_f32 v9, v9")
A("v_mul_f32 v48, v48, v76"); A("v_fmac_f32 v48, v49, v78"); A("v_fmac_f32 v48, v50, v80"); A("v_fmac_f32 v48, v51, v82")
A("v_mul_f32 v48, v48, v9")
A("v_cvt_pk_bf16_f32 v48, v48, v48")
A(f"s_mul_i32 s33, s30, {HPITCH}"); A(f"s_add_u32 s33, s33, {LO}"); A("v_lshlrev_b32 v6, 1, v2"); A("v_add_u32 v6, s33, v6")
A("ds_write_b16 v6, v48")
A("v_and_b32 v6, 7, v3"); A(f"v_mul_u32_u24 v6, {HPITCH}, v6"); A("v_lshl_add_u32 v6, v4, 4, v6"); A(f"v_add_u32 v6, {LO}, v6")
for i in range(4): A(f"v_mov_b32 v{56+i}, 0")
A("s_lshl_b32 s33, s30, 9"); A(f"s_add_u32 s33, s33, {LORED + 16384}")
A("v_lshlrev_b32 v7, 8, v4"); A("v_lshl_add_u32 v7, v3, 2, v7"); A("v_add_u32 v7, s33, v7")
A("v_lshlrev_b32 v8, 4, v2"); A("v_add_u32 v8, s33, v8")
A("v_lshrrev_b32 v5, 2, v2"); A("v_lshlrev_b32 v5, 9, v5"); A("v_and_b32 v9, 3, v2"); A("v_lshl_add_u32 v5, v9, 4, v5")
A("s_lshl_b32 s33, s2, 12"); A("s_lshl_b32 s34, s30, 6"); A("s_add_u32 s33, s33, s34"); A(f"s_add_u32 s33, s33, {WSB}"); A("v_add_u32 v5, s33, v5")
bbar()
A("ds_read_b128 v[48:51], v6"); A("ds_read_b128 v[52:55], v6 offset:64")
A("s_waitcnt lgkmcnt(0)")
A("v_mfma_f32_16x16x32_bf16 v[56:59], v[48:51], v[104:107], v[56:59]")
A("v_mfma_f32_16x16x32_bf16 v[56:59], v[52:55], v[108:111], v[56:59]")
nop(10)
for r in range(4): guard(56+r)
A("v_cmp_gt_u32 vcc, 32, v2"); A("s_and_saveexec_b64 s[36:37], vcc")
for r in range(4): A(f"ds_write_b32 v7, v{56+r} offset:{r*64}")
A("ds_read_b128 v[60:63], v8"); A("s_waitcnt lgkmcnt(0)")
A("global_store_dwordx4 v5, v[60:63], s[88:89] sc1")
stamp(7)
if STAMPS:
    A("s_cmp_lg_u32 s30, 0"); A("s_cbranch_scc1 L_end")
    stamp_flush(256)
A("s_endpgm")

LB("L_ctrl")
C("control waves")
stamp(0)
A("s_setprio 3")
A("s_sub_u32 s31, s30, 8")
A("s_cmp_lg_u32 s30, 8"); A("s_cbranch_scc1 L_n0"); A("s_cmp_lg_u32 s2, 0"); A("s_cbranch_scc1 L_n0")
A("s_memrealtime s[96:97]"); A("s_waitcnt lgkmcnt(0)"); A("s_or_b32 s96, s96, 1")
A("v_mov_b32 v12, s96"); A("v_mov_b32 v13, 0")
A("s_mov_b64 exec, 1"); A("global_store_dword v13, v12, s[86:87] sc1"); A("s_mov_b64 exec, -1")
LB("L_n0")
srd(40, 70, 0x400000); srd(48, 76, 512*1792*2)
A("v_lshrrev_b32 v5, 5, v2"); A("v_and_b32 v6, 31, v2")
A("s_lshl_b32 s32, s31, 1"); A("v_add_u32 v7, s32, v5")
A("v_lshlrev_b32 v8, 10, v7"); A("v_lshl_add_u32 v8, v6, 5, v8")
A("global_load_dwordx4 v[40:43], v8, s[64:65]"); A("global_load_dwordx4 v[44:47], v8, s[64:65] offset:16")
A("s_lshr_b32 s26, s21, 3"); A("s_and_b32 s27, s21, 7"); A("s_lshl_b32 s28, s20, 3"); A("s_add_u32 s27, s27, s28")
A("v_lshrrev_b32 v9, 3, v2"); A("v_and_b32 v10, 7, v2"); A("v_lshlrev_b32 v11, 13, v9"); A("v_lshl_add_u32 v11, v10, 4, v11")
A("s_lshl_b32 s32, s26, 7"); A("s_lshl_b32 s33, s31, 5"); A("s_add_u32 s32, s32, s33"); A("s_lshl_b32 s32, s32, 13")
A("s_lshl_b32 s33, s27, 7"); A("s_add_u32 s32, s32, s33")
A("s_lshl_b32 s34, s31, 12"); A(f"s_add_u32 s35, s34, {LWQ}")
for n in range(4):
    A(f"s_add_u32 m0, s35, {n*1024}"); A(f"s_add_u32 s33, s32, {n*8*8192}")
    A("buffer_load_dwordx4 v11, s[40:43], s33 offen nt lds")
A("s_mul_i32 s28, s20, 14"); A("s_add_u32 s28, s28, s21"); A("s_lshr_b32 s29, s28, 2"); A("s_and_b32 s28, s28, 3")
A("s_cmp_ge_u32 s21, 14"); A("s_cbranch_scc1 L_now1")
A("v_mul_u32_u24 v11, 3584, v9"); A("v_lshl_add_u32 v11, v10, 4, v11")
A("s_lshl_b32 s32, s28, 7"); A("s_lshl_b32 s33, s31, 5"); A("s_add_u32 s32, s32, s33"); A("s_mul_i32 s32, s32, 3584")
A("s_lshl_b32 s33, s29, 7"); A("s_add_u32 s32, s32, s33")
A(f"s_add_u32 s35, s34, {LW1}")
for n in range(4):
    A(f"s_add_u32 m0, s35, {n*1024}"); A(f"s_add_u32 s33, s32, {n*8*3584}")
    A("buffer_load_dwordx4 v11, s[48:51], s33 offen nt lds")
LB("L_now1")
A("v_mov_b32 v60, 0")
A("global_load_dword v61, v60, s[86:87] sc1")
for i in range(4): A(f"v_mov_b32 v{12+i}, -1")
A("v_lshlrev_b32 v16, 4, v2")
A("s_cmp_eq_u32 s31, 0"); A("s_cbranch_scc0 L_cl1")
A(f"s_lshl_b32 s32, s2, 12"); A(f"s_add_u32 s32, s32, {WOB}"); A("v_add_u32 v17, s32, v16")
A("global_store_dwordx4 v17, v[12:15], s[88:89] sc1"); A("global_store_dwordx4 v17, v[12:15], s[88:89] offset:1024 sc1")
A("s_mov_b64 exec, 0xf"); A("global_store_dwordx4 v17, v[12:15], s[88:89] offset:2048 sc1"); A("s_mov_b64 exec, -1")
A("s_branch L_cldone")
LB("L_cl1")
A("s_cmp_eq_u32 s31, 3"); A("s_cbranch_scc1 L_cl3")
A(f"s_lshl_b32 s32, s2, 12"); A("s_sub_u32 s33, s31, 1"); A("s_lshl_b32 s33, s33, 11"); A("s_add_u32 s32, s32, s33"); A(f"s_add_u32 s32, s32, {WSB}"); A("v_add_u32 v17, s32, v16")
A("global_store_dwordx4 v17, v[12:15], s[88:89] sc1"); A("global_store_dwordx4 v17, v[12:15], s[88:89] offset:1024 sc1")
A("s_branch L_cldone")
LB("L_cl3")
A(f"s_lshl_b32 s32, s2, 11"); A(f"s_add_u32 s32, s32, {WYB}"); A("v_add_u32 v17, s32, v16")
A("global_store_dwordx4 v17, v[12:15], s[88:89] sc1"); A("global_store_dwordx4 v17, v[12:15], s[88:89] offset:1024 sc1")
LB("L_cldone")
for i in range(4): A(f"v_mov_b32 v{12+i}, 0")
A("v_lshrrev_b32 v17, 5, v2"); A("s_lshl_b32 s32, s31, 1"); A("v_add_u32 v17, s32, v17"); A("v_lshlrev_b32 v17, 15, v17")
A("v_and_b32 v18, 31, v2"); A("v_lshl_add_u32 v17, v18, 4, v17")
A(f"s_lshl_b32 s32, s26, 18"); A("s_lshl_b32 s33, s27, 9"); A("s_add_u32 s32, s32, s33"); A(f"s_add_u32 s32, s32, {WQP}"); A("v_add_u32 v19, s32, v17")
A("global_store_dwordx4 v19, v[12:15], s[88:89] sc1")
A("s_cmp_ge_u32 s21, 14"); A("s_cbranch_scc1 L_pt2")
A("v_lshrrev_b32 v17, 5, v2"); A("s_lshl_b32 s32, s31, 1"); A("v_add_u32 v17, s32, v17"); A("v_mul_u32_u24 v17, 14336, v17")
A("v_lshl_add_u32 v17, v18, 4, v17")
A(f"s_mul_i32 s32, s28, {8*14336}"); A("s_lshl_b32 s33, s29, 9"); A("s_add_u32 s32, s32, s33"); A(f"s_add_u32 s32, s32, {WHP}"); A("v_add_u32 v19, s32, v17")
A("global_store_dwordx4 v19, v[12:15], s[88:89] sc1")
LB("L_pt2")
A("s_cmp_lg_u32 s31, 0"); A("s_cbranch_scc1 L_n1")
A("ds_write_b128 v125, v[12:15]"); A("ds_write_b128 v125, v[12:15] offset:16")
LB("L_n1")
A("s_waitcnt lgkmcnt(0)")
A("s_barrier")
C("LN")
A("s_waitcnt vmcnt(0)")
stamp(1)
for i in range(8):
    A(f"v_lshlrev_b32 v{16+2*i}, 16, v{40+i}"); A(f"v_and_b32 v{17+2*i}, 0xffff0000, v{40+i}")
A("v_add_f32 v32, v16, v17")
for i in range(2, 16): A(f"v_add_f32 v32, v32, v{16+i}")
allred32(32, 33)
A("v_mul_f32 v32, 0x3b000000, v32")
A("v_sub_f32 v34, v16, v32"); A("v_mul_f32 v33, v34, v34")
for i in range(1, 16):
    A(f"v_sub_f32 v34, v{16+i}, v32"); A("v_fmac_f32 v33, v34, v34")
allred32(33, 34)
A("v_mul_f32 v33, 0x3b000000, v33")
rnd1(32); rnd1(33)
A("v_add_f32 v33, 0x3727c5ac, v33"); rnd1(33)
A("v_sqrt_f32 v33, v33"); nop(1); rnd1(33)
A("v_rcp_f32 v33, v33"); nop(1)
for i in range(0, 16, 2):
    a, b = 16+i, 17+i
    A(f"v_sub_f32 v{a}, v{a}, v32"); A(f"v_sub_f32 v{b}, v{b}, v32")
    A(f"v_cvt_pk_bf16_f32 v34, v{a}, v{b}")
    A(f"v_lshlrev_b32 v{a}, 16, v34"); A(f"v_and_b32 v{b}, 0xffff0000, v34")
    A(f"v_mul_f32 v{a}, v{a}, v33"); A(f"v_mul_f32 v{b}, v{b}, v33")
    A(f"v_cvt_pk_bf16_f32 v{40+i//2}, v{a}, v{b}")
A(f"v_mul_u32_u24 v8, {XNP}, v7"); A("v_lshl_add_u32 v8, v6, 5, v8"); A(f"v_add_u32 v8, {LXN}, v8")
A("ds_write_b128 v8, v[40:43]"); A("ds_write_b128 v8, v[44:47] offset:16")
A("v_mov_b32 v13, 0"); A("v_mov_b32 v12, v61")
A("v_cmp_ne_u32 vcc, 0, v12"); A("s_cbranch_vccnz L_pn_done")
spin_head("L_pn")
A("global_load_dword v12, v13, s[86:87] sc1"); A("s_waitcnt vmcnt(0)")
A("v_cmp_eq_u32 vcc, 0, v12")
spin_tail("L_pn", "L_pn_done", sleep=1)
A("v_readfirstlane_b32 s95, v12")
cbar()
A("s_cmp_lg_u32 s31, 3"); A("s_cbranch_scc1 L_nf")
A("v_mov_b32 v12, 1"); A("v_mov_b32 v13, s95"); A(f"s_lshl_b32 s32, s2, 3"); A(f"s_add_u32 s32, s32, {WFL}"); A("v_mov_b32 v14, s32")
A("s_mov_b64 exec, 1"); A("global_store_dwordx2 v14, v[12:13], s[88:89] sc1"); A("s_mov_b64 exec, -1")
LB("L_nf")
stamp(2)
C("jobs")
def job(lw, skg, wsbase, rowpitch, scg):
    A("v_and_b32 v5, 7, v3"); A(f"v_mul_u32_u24 v5, {XNP}, v5"); A("v_lshl_add_u32 v5, v4, 4, v5")
    A(f"s_lshl_b32 s32, s{skg}, 8"); A(f"s_add_u32 s32, s32, {LXN}"); A("v_add_u32 v5, s32, v5")
    for s in range(4): A(f"ds_read_b128 v[{16+4*s}:{19+4*s}], v5 offset:{s*64}")
    A("v_lshrrev_b32 v6, 2, v3"); A("v_lshl_add_u32 v6, v4, 3, v6"); A("v_lshlrev_b32 v6, 7, v6")
    A("v_and_b32 v7, 3, v3"); A("v_lshl_add_u32 v6, v7, 3, v6")
    A("s_lshl_b32 s32, s31, 5"); A(f"s_add_u32 s32, s32, {lw}"); A("v_add_u32 v6, s32, v6")
    for s in range(4):
        A(f"ds_read_b64_tr_b16 v[{32+4*s}:{33+4*s}], v6 offset:{s*4096}")
        A(f"ds_read_b64_tr_b16 v[{34+4*s}:{35+4*s}], v6 offset:{s*4096+512}")
    for i in range(4): A(f"v_mov_b32 v{48+i}, 0")
    for r in range(4): A(f"v_mov_b32 v{53+2*r}, s95")
    A(f"v_mul_u32_u24 v7, {4*rowpitch}, v4"); A("v_lshl_add_u32 v7, v3, 3, v7")
    A(f"s_mul_i32 s32, s{skg}, {8*rowpitch}"); A(f"s_lshl_b32 s33, s{scg}, 9"); A("s_add_u32 s32, s32, s33"); A("s_lshl_b32 s33, s31, 7"); A("s_add_u32 s32, s32, s33")
    A(f"s_add_u32 s32, s32, {wsbase}"); A("v_add_u32 v7, s32, v7")
    A("s_waitcnt lgkmcnt(0)")
    for s in range(4):
        A(f"v_mfma_f32_16x16x32_bf16 v[48:51], v[{16+4*s}:{19+4*s}], v[{32+4*s}:{35+4*s}], v[48:51]")
    nop(10)
    for r in range(4): A(f"v_mov_b32 v{52+2*r}, v{48+r}")
    A("v_cmp_gt_u32 vcc, 32, v2"); A("s_and_saveexec_b64 s[36:37], vcc")
    for r in range(4):
        A(f"v_add_u32 v8, {r*rowpitch}, v7"); A(f"global_store_dwordx2 v8, v[{52+2*r}:{53+2*r}], s[88:89] sc1")
    A("s_mov_b64 exec, s[36:37]")
job(LWQ, 26, WQP, 32768, 27)
A("s_cmp_ge_u32 s21, 14"); A("s_cbranch_scc1 L_noh")
job(LW1, 28, WHP, 14336, 29)
LB("L_noh")
stamp(3)
A("s_cmp_ge_u32 s31, 2"); A("s_cbranch_scc1 L_sph")
C("q gather (waves 0,1): sentinel then full")
A("v_and_b32 v5, 31, v2"); A("v_lshrrev_b32 v6, 3, v5"); A("v_and_b32 v7, 7, v5")
A("v_lshlrev_b32 v6, 18, v6"); A("v_lshl_add_u32 v6, v7, 9, v6")
A(f"s_lshl_b32 s32, s22, 15"); A("s_lshl_b32 s33, s20, 12"); A("s_add_u32 s32, s32, s33"); A(f"s_add_u32 s32, s32, {WQP}")
A("s_lshl_b32 s33, s31, 8"); A("s_add_u32 s33, s33, s32"); A("s_add_u32 s33, s33, 248"); A("v_add_u32 v6, s33, v6")
spin_head("L_sq")
A("global_load_dwordx2 v[16:17], v6, s[88:89] sc1"); A("s_waitcnt vmcnt(0)")
A("v_cmp_ne_u32 vcc, s95, v17")
spin_tail("L_sq", "L_sq_done", sleep=2)
A("s_lshl_b32 s33, s31, 6"); A("v_add_u32 v5, s33, v2")
A("v_lshlrev_b32 v6, 5, v5"); A("v_add_u32 v6, s32, v6")
for kg in range(1, 4): A(f"v_add_u32 v{8+kg}, {kg*262144}, v6")
A("v_mov_b32 v8, v6")
spin_head("L_pq")
for kg in range(4):
    A(f"global_load_dwordx4 v[{16+8*kg}:{19+8*kg}], v{8+kg}, s[88:89] sc1")
    A(f"global_load_dwordx4 v[{20+8*kg}:{23+8*kg}], v{8+kg}, s[88:89] offset:16 sc1")
A("s_waitcnt vmcnt(0)")
chk_tags([17+2*i for i in range(16)])
spin_tail("L_pq", "L_pq_done", sleep=2)
for i in range(4):
    A(f"v_add_f32 v{16+2*i}, v{16+2*i}, v{24+2*i}"); A(f"v_add_f32 v{32+2*i}, v{32+2*i}, v{40+2*i}"); A(f"v_add_f32 v{16+2*i}, v{16+2*i}, v{32+2*i}")
A("v_cvt_pk_bf16_f32 v24, v16, v18"); A("v_cvt_pk_bf16_f32 v25, v20, v22")
A("v_lshlrev_b32 v6, 3, v5"); A(f"v_add_u32 v6, {LQ}, v6"); A("ds_write_b64 v6, v[24:25]")
lds_inc(24)
LB("L_sph")
stamp(4)
lds_wait(24, 2)
stamp(5)
C("S phase: control wave cw handles keys [64cw, +64) = bulk chunks w = 2cw, 2cw+1 ; tiles tt=0..3 (w = 2cw + (tt>>1), t = tt&1)")
lds_wait(16, 8)
stamp(6)
A("v_and_b32 v5, 3, v3"); A("v_lshlrev_b32 v5, 2, v5"); A("v_lshrrev_b32 v6, 2, v3"); A("v_or_b32 v5, v5, v6")
A("v_lshlrev_b32 v6, 8, v5"); A("s_lshl_b32 s32, s31, 14"); A("v_add_u32 v6, s32, v6")
for s in range(4):
    A(f"v_add_u32 v7, {4*s}, v4"); A("v_xor_b32 v7, v7, v5"); A(f"v_lshl_add_u32 v{8+s}, v7, 4, v6")
for tt in range(4):
    for s in range(4):
        A(f"ds_read_b128 v[{16+16*tt+4*s}:{19+16*tt+4*s}], v{8+s} offset:{tt*4096}")
A("v_and_b32 v7, 3, v3"); A("v_lshlrev_b32 v7, 8, v7"); A(f"v_lshl_add_u32 v7, v4, 4, v7"); A(f"v_add_u32 v7, {LQ}, v7")
for s in range(4): A(f"ds_read_b128 v[{80+4*s}:{83+4*s}], v7 offset:{s*64}")
for i in range(16): A(f"v_mov_b32 v{96+i}, 0")
A("s_waitcnt lgkmcnt(0)")
for s in range(4):
    for tt in range(4):
        a = 96 + 4*tt
        A(f"v_mfma_f32_16x16x32_bf16 v[{a}:{a+3}], v[{16+16*tt+4*s}:{19+16*tt+4*s}], v[{80+4*s}:{83+4*s}], v[{a}:{a+3}]")
nop(10)
A("s_mov_b32 s34, 0x3db504f3")
for i in range(0, 16, 2):
    a, b = 96+i, 97+i
    A(f"v_cvt_pk_bf16_f32 v8, v{a}, v{b}")
    A(f"v_lshlrev_b32 v{a}, 16, v8"); A(f"v_and_b32 v{b}, 0xffff0000, v8")
    A(f"v_mul_f32 v{a}, s34, v{a}"); A(f"v_mul_f32 v{b}, s34, v{b}")
    A(f"v_cvt_pk_bf16_f32 v8, v{a}, v{b}")
    A(f"v_lshlrev_b32 v{a}, 16, v8"); A(f"v_and_b32 v{b}, 0xffff0000, v8")
A("v_max3_f32 v112, v96, v97, v98")
for i in range(99, 111, 2): A(f"v_max3_f32 v112, v112, v{i}, v{i+1}")
A("v_max_f32 v112, v112, v111")
red_g(112, 8, "v_max_f32")
A("v_and_b32 v7, 3, v3"); A("v_lshlrev_b32 v7, 4, v7")
A("s_lshl_b32 s33, s31, 2"); A(f"s_add_u32 s33, s33, {LMX}"); A("v_add_u32 v9, s33, v7")
A("ds_write_b32 v9, v112")
cbar()
A(f"v_add_u32 v9, {LMX}, v7"); A("ds_read_b128 v[16:19], v9"); A("s_waitcnt lgkmcnt(0)")
A("v_max3_f32 v112, v16, v17, v18"); A("v_max_f32 v112, v112, v19")
A("s_mov_b32 s34, 0x3fb8aa3b")
for i in range(16):
    a = 96 + i
    A(f"v_sub_f32 v{a}, v{a}, v112"); A(f"v_mul_f32 v{a}, s34, v{a}"); A(f"v_exp_f32 v{a}, v{a}")
nop(1)
A("v_add_f32 v113, v96, v97")
for i in range(98, 112): A(f"v_add_f32 v113, v113, v{i}")
red_g(113, 8, "v_add_f32")
A("s_lshl_b32 s33, s31, 2"); A(f"s_add_u32 s33, s33, {LLS}"); A("v_add_u32 v9, s33, v7")
A("ds_write_b32 v9, v113")
for i in range(16): A(f"v_cvt_pk_bf16_f32 v{96+i}, v{96+i}, v{96+i}")
A("v_and_b32 v7, 3, v3"); A("v_lshlrev_b32 v7, 7, v7"); A("v_lshl_add_u32 v7, v4, 5, v7")
A("s_lshl_b32 s33, s31, 10"); A(f"s_add_u32 s33, s33, {LP}"); A("v_add_u32 v7, s33, v7")
A("v_cmp_gt_u32 vcc, 4, v3"); A("s_and_saveexec_b64 s[36:37], vcc")
for tt in range(4):
    A(f"ds_write_b128 v7, v[{96+4*tt}:{99+4*tt}] offset:{(tt>>1)*512 + (tt&1)*16}")
A("s_mov_b64 exec, s[36:37]")
lds_inc(20)
stamp(7)
A("s_cmp_lt_u32 s31, 2"); A("s_cbranch_scc1 L_nohg")
LB("L_hg")
C("h gather (waves 2,3)")
A("v_and_b32 v5, 3, v2"); A("v_mul_u32_u24 v5, 114688, v5"); A("v_bfe_u32 v6, v2, 2, 1"); A("v_mul_u32_u24 v6, 440, v6"); A("v_add_u32 v5, v5, v6")
A("s_mul_i32 s32, s21, 448"); A(f"s_add_u32 s32, s32, {WHP + 7*14336}"); A("v_add_u32 v5, s32, v5")
spin_head("L_sh")
A("global_load_dwordx2 v[16:17], v5, s[88:89] sc1"); A("s_waitcnt vmcnt(0)")
A("v_cmp_ne_u32 vcc, s95, v17")
spin_tail("L_sh", "L_sh_done", sleep=2)
A("s_sub_u32 s32, s31, 2"); A("s_lshl_b32 s32, s32, 6"); A("v_add_u32 v5, s32, v2")
A("v_lshrrev_b32 v6, 4, v5"); A("v_and_b32 v7, 15, v5")
A("v_min_u32 v8, 13, v7")
A("v_mul_u32_u24 v9, 14336, v6"); A("v_lshl_add_u32 v9, v8, 5, v9")
A("s_mul_i32 s32, s21, 448"); A(f"s_add_u32 s32, s32, {WHP}"); A("v_add_u32 v9, s32, v9")
A("s_mul_i32 s32, s21, 112"); A("v_lshlrev_b32 v10, 3, v8"); A("v_add_u32 v10, s32, v10")
A("global_load_dwordx2 v[52:53], v10, s[78:79]")
for kg in range(4): A(f"v_add_u32 v{10+kg}, {kg*8*14336}, v9")
spin_head("L_ph")
for kg in range(4):
    A(f"global_load_dwordx4 v[{16+8*kg}:{19+8*kg}], v{10+kg}, s[88:89] sc1")
    A(f"global_load_dwordx4 v[{20+8*kg}:{23+8*kg}], v{10+kg}, s[88:89] offset:16 sc1")
A("s_waitcnt vmcnt(0)")
chk_tags([17+2*i for i in range(16)])
spin_tail("L_ph", "L_ph_done", sleep=2)
for i in range(4):
    A(f"v_add_f32 v{16+2*i}, v{16+2*i}, v{24+2*i}"); A(f"v_add_f32 v{32+2*i}, v{32+2*i}, v{40+2*i}"); A(f"v_add_f32 v{16+i}, v{16+2*i}, v{32+2*i}")
    rnd1(16+i)
A("v_lshlrev_b32 v20, 16, v52"); A("v_and_b32 v21, 0xffff0000, v52"); A("v_lshlrev_b32 v22, 16, v53"); A("v_and_b32 v23, 0xffff0000, v53")
A("s_mov_b32 s32, 0x3d372713"); A("s_mov_b32 s33, 0x40135761")
for i in range(4):
    x = 16+i
    A(f"v_add_f32 v{x}, v{x}, v{20+i}"); rnd1(x)
    A(f"v_mul_f32 v24, v{x}, v{x}"); A(f"v_mul_f32 v24, s32, v24"); A(f"v_fma_f32 v24, v24, v{x}, v{x}")
    A(f"v_mul_f32 v24, s33, v24"); A("v_exp_f32 v24, v24"); nop(1)
    A("v_add_f32 v24, 1.0, v24"); A("v_rcp_f32 v24, v24"); nop(1)
    A("v_fma_f32 v24, v24, -2.0, 1.0")
    A("v_add_f32 v24, 1.0, v24"); A(f"v_mul_f32 v24, v24, v{x}"); A(f"v_mul_f32 v{x}, 0.5, v24")
A("v_cvt_pk_bf16_f32 v20, v16, v17"); A("v_cvt_pk_bf16_f32 v21, v18, v19")
A("v_cmp_gt_u32 vcc, 14, v7"); nop(2); A("v_cndmask_b32 v20, 0, v20, vcc"); A("v_cndmask_b32 v21, 0, v21, vcc")
A(f"v_mul_u32_u24 v9, {HPITCH}, v6"); A("v_lshl_add_u32 v9, v7, 3, v9"); A(f"v_add_u32 v9, {LH}, v9")
A("ds_write_b64 v9, v[20:21]")
lds_inc(28)
LB("L_nohg")
C("wave 1: flags")
A("s_cmp_lg_u32 s31, 1"); A("s_cbranch_scc1 L_nfl")
A(f"v_lshlrev_b32 v7, 5, v2"); A(f"v_add_u32 v7, {WFL}, v7")
spin_head("L_pfl")
A("global_load_dwordx4 v[16:19], v7, s[88:89] sc1"); A("global_load_dwordx4 v[20:23], v7, s[88:89] offset:16 sc1"); A("s_waitcnt vmcnt(0)")
chk_tags([17, 19, 21, 23])
spin_tail("L_pfl", "L_pfl_done", sleep=2)
A("v_mov_b32 v16, 1"); A("ds_write_b32 v125, v16 offset:12")
LB("L_nfl")
C("FFN2 (W2 landed: K-landed counter covers ops 0..8)")
lds_wait(28, 2)
A("v_and_b32 v5, 7, v3"); A(f"v_mul_u32_u24 v5, {HPITCH}, v5"); A("v_lshl_add_u32 v5, v4, 4, v5"); A(f"v_add_u32 v5, {LH}, v5")
A("ds_read_b128 v[16:19], v5"); A("ds_read_b128 v[20:23], v5 offset:64")
A("v_lshrrev_b32 v6, 2, v3"); A("v_lshl_add_u32 v6, v4, 3, v6"); A("v_lshlrev_b32 v6, 7, v6")
A("v_and_b32 v7, 3, v3"); A("v_lshl_add_u32 v6, v7, 3, v6")
A("s_lshl_b32 s32, s31, 5"); A(f"s_add_u32 s32, s32, {LW2}"); A("v_add_u32 v6, s32, v6")
for s in range(2):
    A(f"ds_read_b64_tr_b16 v[{32+4*s}:{33+4*s}], v6 offset:{s*4096}")
    A(f"ds_read_b64_tr_b16 v[{34+4*s}:{35+4*s}], v6 offset:{s*4096+512}")
for i in range(4): A(f"v_mov_b32 v{48+i}, 0")
A("v_lshlrev_b32 v7, 10, v4"); A("v_lshl_add_u32 v7, v3, 2, v7")
A("s_lshl_b32 s32, s2, 11"); A("s_lshl_b32 s33, s31, 6"); A("s_add_u32 s32, s32, s33"); A(f"s_add_u32 s32, s32, {WYB}"); A("v_add_u32 v7, s32, v7")
A("s_waitcnt lgkmcnt(0)")
A("v_mfma_f32_16x16x32_bf16 v[48:51], v[16:19], v[32:35], v[48:51]")
A("v_mfma_f32_16x16x32_bf16 v[48:51], v[20:23], v[36:39], v[48:51]")
nop(10)
for r in range(4): guard(48+r)
A("v_cmp_gt_u32 vcc, 32, v2"); A("s_and_saveexec_b64 s[36:37], vcc")
for r in range(4): A(f"global_store_dword v7, v{48+r}, s[88:89] offset:{r*256} sc1")
A("s_mov_b64 exec, s[36:37]")
A("s_cmp_lg_u32 s31, 0"); A("s_cbranch_scc1 L_end")
C("wave 0: y -> g, then final")
lds_wait(12, 1)
A("v_lshrrev_b32 v5, 2, v2"); A("v_and_b32 v6, 3, v2")
A("v_lshlrev_b32 v7, 14, v5"); A("v_lshl_add_u32 v7, v6, 4, v7")
A("s_lshl_b32 s32, s20, 11"); A("s_lshl_b32 s33, s22, 8"); A("s_add_u32 s32, s32, s33"); A("s_lshl_b32 s33, s23, 6"); A("s_add_u32 s32, s32, s33"); A(f"s_add_u32 s32, s32, {WYB}")
A("v_add_u32 v7, s32, v7"); A("v_add_u32 v8, 0x40000, v7")
A("s_lshl_b32 s32, s20, 7"); A("s_lshl_b32 s33, s23, 5"); A("s_add_u32 s32, s32, s33"); A("v_lshlrev_b32 v9, 3, v6"); A("v_add_u32 v9, s32, v9")
A("global_load_dwordx2 v[100:101], v9, s[82:83]")
A("s_lshl_b32 s33, s22, 10"); A("v_add_u32 v10, s33, v9")
A("global_load_dwordx2 v[102:103], v10, s[64:65]")
def red16(regs):
    for r in regs: dpp_add(r, "row_shr:4")
    for r in regs: dpp_add(r, "row_shr:8")
    for r in regs: red_g(r, 11, "v_add_f32")
spin_head("L_py")
A("global_load_dwordx4 v[16:19], v7, s[88:89] sc1"); A("global_load_dwordx4 v[20:23], v8, s[88:89] sc1"); A("s_waitcnt vmcnt(0)")
chk_empty(list(range(16, 24)))
spin_tail("L_py", "L_py_done", sleep=2)
stamp(8)
for i in range(4): A(f"v_add_f32 v{104+i}, v{16+i}, v{20+i}")
red16([104, 105, 106, 107])
A("v_lshlrev_b32 v20, 16, v100"); A("v_and_b32 v21, 0xffff0000, v100"); A("v_lshlrev_b32 v22, 16, v101"); A("v_and_b32 v23, 0xffff0000, v101")
for i in range(4):
    x = 104+i
    rnd1(x); A(f"v_add_f32 v{x}, v{x}, v{20+i}"); rnd1(x)
    A(f"v_mul_f32 v24, 0xbfb8aa3b, v{x}"); A("v_exp_f32 v24, v24"); nop(1); A("v_add_f32 v24, 1.0, v24"); A("v_rcp_f32 v24, v24"); nop(1)
    A(f"v_mul_f32 v{x}, v{x}, v24"); rnd1(x)
A("v_and_b32 v7, 7, v5"); A("v_lshrrev_b32 v8, 3, v5"); A("v_lshl_add_u32 v7, v8, 5, v7")
A("v_lshlrev_b32 v7, 12, v7"); A("v_lshl_add_u32 v7, v6, 4, v7")
A("s_lshr_b32 s32, s20, 1"); A("s_lshl_b32 s32, s32, 15")
A("s_lshl_b32 s33, s22, 9"); A("s_add_u32 s32, s32, s33")
A("s_and_b32 s33, s20, 1"); A("s_lshl_b32 s33, s33, 2"); A("s_add_u32 s33, s33, s23"); A("s_lshl_b32 s33, s33, 6"); A("s_add_u32 s32, s32, s33")
A(f"s_add_u32 s32, s32, {WSB}"); A("v_add_u32 v108, s32, v7")
for i in range(1, 4): A(f"v_add_u32 v{108+i}, {i*64*4096}, v108")
stamp(9)
spin_head("L_pz")
for i in range(4): A(f"global_load_dwordx4 v[{16+4*i}:{19+4*i}], v{108+i}, s[88:89] sc1")
A("s_waitcnt vmcnt(0)")
chk_empty(list(range(16, 32)))
spin_tail("L_pz", "L_pz_done", sleep=1)
stamp(11)
for i in range(4):
    A(f"v_add_f32 v{16+i}, v{16+i}, v{20+i}"); A(f"v_add_f32 v{24+i}, v{24+i}, v{28+i}"); A(f"v_add_f32 v{112+i}, v{16+i}, v{24+i}")
red16([112, 113, 114, 115])
A("v_lshlrev_b32 v20, 16, v102"); A("v_and_b32 v21, 0xffff0000, v102"); A("v_lshlrev_b32 v22, 16, v103"); A("v_and_b32 v23, 0xffff0000, v103")
for i in range(4):
    x = 112+i
    rnd1(x); A(f"v_mul_f32 v{x}, v{x}, v{104+i}"); rnd1(x); A(f"v_add_f32 v{x}, v{x}, v{20+i}")
A("v_cvt_pk_bf16_f32 v28, v112, v113"); A("v_cvt_pk_bf16_f32 v29, v114, v115")
A("v_cmp_le_u32 vcc, 12, v2"); A("v_cmp_gt_u32 s[36:37], 16, v2"); A("s_and_b64 vcc, vcc, s[36:37]"); A("s_and_saveexec_b64 s[36:37], vcc")
A("global_store_dwordx2 v10, v[28:29], s[84:85]")
stamp(12)
stamp_flush(0)
LB("L_end")
A("s_endpgm")
L.append('.section .rodata,"a"')
L.append(".p2align 6")
L.append(f".amdhsa_kernel {NAME}_kernel")
L.append("  .amdhsa_next_free_vgpr 128"); L.append("  .amdhsa_next_free_sgpr 102"); L.append("  .amdhsa_accum_offset 128")
L.append("  .amdhsa_group_segment_fixed_size 0"); L.append("  .amdhsa_kernarg_size 104"); L.append("  .amdhsa_user_sgpr_count 2")
L.append("  .amdhsa_user_sgpr_kernarg_segment_ptr 1"); L.append("  .amdhsa_system_sgpr_workgroup_id_x 1")
L.append(".end_amdhsa_kernel")
out = [x for x in L if x is not None]
dst = [a for a in sys.argv[1:] if not a.startswith("--")]
open(dst[0] if dst else f"cdna_kernels/{NAME}.s", "w").write("\n".join(out) + "\n")
```

```python
import sys
NAME = "recurrent_scan__sliding_block_cached__dense_activation_gelu__decode"
STAMPS = "--stamps" in sys.argv
DEPTH = 2
for a in sys.argv:
    if a.startswith("--depth="): DEPTH = int(a.split("=")[1])
L = []
def A(s): L.append("    " + s)
def LB(s): L.append(s + ":")
def C(s): L.append("    ; " + s)

LK = 0; LWQ = 65536; LW1 = 81920; LWO = 98304; LW2 = 114688; LXN = 122880; XNP = 1040
LQ = 131328; LH = 132352; HPITCH = 144; LO = 133504; LMX = 134656; LLS = 134784; LSY = 134912
LP = 135168
LORED = 65536
LDS_TOTAL = 139264
WQP = 0x0; WHP = 0x100000; WOB = 0x200000; WSB = 0x400000; WYB = 0x600000; WFL = 0x700000; WTM = 0x800000
SPIN = 200000

def nop(n):
    while n > 0:
        k = min(n, 16); A(f"s_nop {k-1}"); n -= k
def stamp(k):
    if not STAMPS: return
    A("s_memrealtime s[98:99]"); A("s_waitcnt lgkmcnt(0)")
    A(f"v_writelane_b32 v126, s98, {k}")
def stamp_flush(base):
    if not STAMPS: return
    A("s_mov_b64 exec, -1")
    A(f"s_lshl_b32 s97, s2, 9"); A(f"s_add_u32 s97, s97, {WTM + base}")
    A("v_lshlrev_b32 v127, 2, v2"); A("v_add_u32 v127, s97, v127")
    A("global_store_dword v127, v126, s[88:89]")
def srd(d, p, n):
    A(f"s_mov_b32 s{d}, s{p}"); A(f"s_mov_b32 s{d+1}, s{p+1}"); A(f"s_mov_b32 s{d+2}, {hex(n)}"); A(f"s_mov_b32 s{d+3}, 0x20000")
def dpp_add(v, ctrl, op="v_add_f32"):
    nop(2)
    bc = " bound_ctrl:0" if "shr" in ctrl else ""
    A(f"{op}_dpp v{v}, v{v}, v{v} {ctrl} row_mask:0xf bank_mask:0xf{bc}")
def allred32(v, t, op="v_add_f32"):
    dpp_add(v, "quad_perm:[1,0,3,2]", op); dpp_add(v, "quad_perm:[2,3,0,1]", op)
    dpp_add(v, "row_half_mirror", op); dpp_add(v, "row_mirror", op)
    A(f"v_mov_b32 v{t}, v{v}"); nop(2)
    A(f"v_permlane16_swap_b32 v{v}, v{t}"); nop(1)
    A(f"{op} v{v}, v{v}, v{t}")
def red_g(v, t, op):
    A(f"v_mov_b32 v{t}, v{v}"); nop(2)
    A(f"v_permlane16_swap_b32 v{v}, v{t}"); nop(1)
    A(f"{op} v{v}, v{v}, v{t}")
    A(f"v_mov_b32 v{t}, v{v}"); nop(2)
    A(f"v_permlane32_swap_b32 v{v}, v{t}"); nop(1)
    A(f"{op} v{v}, v{v}, v{t}")
def rnd1(v):
    A(f"v_cvt_pk_bf16_f32 v{v}, v{v}, v{v}"); A(f"v_lshlrev_b32 v{v}, 16, v{v}")
def spin_head(lbl):
    A("s_mov_b32 s96, 0"); LB(lbl)
def spin_tail(lbl, done, sleep=0):
    A(f"s_cbranch_vccz {done}")
    if sleep: A(f"s_sleep {sleep}")
    A("s_add_u32 s96, s96, 1"); A(f"s_cmp_lt_u32 s96, {SPIN}"); A(f"s_cbranch_scc1 {lbl}")
    LB(done)
def chk(regs, cmp, val):
    for i, r in enumerate(regs):
        if i == 0: A(f"v_cmp_{cmp}_u32 s[38:39], {val}, v{r}")
        else:
            A(f"v_cmp_{cmp}_u32 vcc, {val}, v{r}"); A("s_or_b64 s[38:39], s[38:39], vcc")
    A("s_mov_b64 vcc, s[38:39]")
def chk_tags(regs): chk(regs, "ne", "s95")
def chk_empty(regs): chk(regs, "eq", "-1")
def guard(v):
    A(f"v_cmp_eq_u32 vcc, -1, v{v}"); nop(2)
    A(f"v_cndmask_b32 v{v}, v{v}, v124, vcc")
_n = [0]
def lds_inc(off):
    A("s_waitcnt lgkmcnt(0)")
    A("v_mov_b32 v123, 1")
    A("s_mov_b64 s[36:37], exec"); A("s_mov_b64 exec, 1")
    A(f"ds_add_u32 v125, v123 offset:{off}")
    A("s_mov_b64 exec, s[36:37]")
def lds_wait(off, val):
    _n[0] += 1; n = _n[0]
    spin_head(f"L_lw{n}")
    A(f"ds_read_b32 v123, v125 offset:{off}"); A("s_waitcnt lgkmcnt(0)")
    A(f"v_cmp_gt_u32 vcc, {val}, v123")
    spin_tail(f"L_lw{n}", f"L_lw{n}_d", sleep=(1 if "--lsleep" in sys.argv else 0))
_cb = [0]; _bb = [0]
def cbar():
    _cb[0] += 1; lds_inc(0); lds_wait(0, 4*_cb[0])
def bbar():
    _bb[0] += 1; lds_inc(8); lds_wait(8, 8*_bb[0])

L.append(f"; @launch grid=(256,1,1) block=(768,1,1) lds={LDS_TOTAL}")
L.append('.amdgcn_target "amdgcn-amd-amdhsa--gfx950"')
L.append(".text")
L.append(f".globl {NAME}_kernel"); L.append(".p2align 8"); L.append(f".type {NAME}_kernel,@function")
LB(f"{NAME}_kernel")
A("s_cmp_ge_u32 s2, 256"); A("s_cbranch_scc1 L_end")
A("s_load_dwordx16 s[64:79], s[0:1], 0")
A("s_load_dwordx8 s[80:87], s[0:1], 64")
A("s_load_dwordx2 s[88:89], s[0:1], 96")
A("s_and_b32 s20, s2, 7"); A("s_lshr_b32 s21, s2, 3"); A("s_lshr_b32 s22, s21, 2"); A("s_and_b32 s23, s21, 3")
A("v_lshrrev_b32 v1, 6, v0"); A("v_and_b32 v2, 63, v0")
A("v_readfirstlane_b32 s30, v1")
A("s_lshl_b32 s24, s22, 3"); A("s_add_u32 s24, s24, s20"); A("s_lshl_b32 s24, s24, 20"); A("s_add_u32 s24, s24, 0xC0000")
A("s_lshl_b32 s25, s23, 16"); A("s_add_u32 s25, s25, s24")
A("v_and_b32 v3, 15, v2"); A("v_lshrrev_b32 v4, 4, v2")
A(f"v_mov_b32 v125, {LSY}"); A("v_mov_b32 v124, 0x7fc00000")
A("s_waitcnt lgkmcnt(0)")
A("s_cmp_ge_u32 s30, 8"); A("s_cbranch_scc1 L_ctrl")

C("bulk waves")
stamp(0)
srd(8, 66, 0x4000000); srd(12, 68, 0x4000000); srd(44, 72, 0x400000); srd(52, 80, 512*1792*2)
A("s_lshl_b32 s31, s30, 13")
A("s_add_u32 s26, s31, s25"); A("s_add_u32 s27, s26, 4096")
for nn in range(4):
    A(f"v_add_u32 v5, {4*nn}, v4"); A("v_xor_b32 v5, v5, v3"); A("v_lshlrev_b32 v5, 4, v5"); A(f"v_lshl_add_u32 v{6+nn}, v4, 8, v5")
A("v_lshrrev_b32 v10, 3, v2"); A("v_lshlrev_b32 v10, 10, v10"); A("v_and_b32 v11, 7, v2"); A("v_lshl_add_u32 v10, v11, 4, v10")
A("s_mul_i32 s32, s21, 56"); A("s_lshl_b32 s33, s30, 3"); A("s_add_u32 s32, s32, s33"); A("s_lshl_b32 s32, s32, 10")
A("s_lshl_b32 s33, s20, 7"); A("s_add_u32 s32, s32, s33")
A("s_lshl_b32 s33, s30, 10"); A(f"s_add_u32 s33, s33, {LW2}")
A("v_lshlrev_b32 v12, 4, v2"); A("v_add_u32 v12, s31, v12"); A("v_add_u32 v13, 4096, v12")
A("v_lshlrev_b32 v14, 10, v4"); A("v_lshl_add_u32 v14, v3, 4, v14")
A("s_lshl_b32 s34, s20, 9"); A("s_lshl_b32 s35, s22, 6"); A("s_add_u32 s34, s34, s35"); A("s_lshl_b32 s35, s30, 3"); A("s_add_u32 s34, s34, s35")
A("s_lshl_b32 s34, s34, 10"); A("s_lshl_b32 s35, s23, 8"); A("s_add_u32 s34, s34, s35")
A("s_lshl_b32 s35, s30, 11"); A(f"s_add_u32 s35, s35, {LWO}")
A("v_and_b32 v15, 7, v3"); A("v_and_b32 v16, 1, v15"); A("v_lshrrev_b32 v17, 1, v15")
A("v_mov_b32 v18, 0xffff"); A("v_mov_b32 v19, 0xffff0000")
A("v_cmp_eq_u32 vcc, 1, v16"); nop(2); A("v_cndmask_b32 v18, v18, v19, vcc")
for r in range(4):
    A(f"v_cmp_eq_u32 vcc, {r}, v17"); nop(2); A(f"v_cndmask_b32 v{112+r}, 0, v18, vcc")
ops = []
for n in range(8):
    def f(n=n):
        if n == 0: A("s_mov_b32 m0, s31"); nop(1)
        if n == 4: A("s_add_u32 m0, s31, 4096"); nop(1)
        A(f"buffer_load_dwordx4 v{6+(n&3)}, s[8:11], s{26 if n<4 else 27} offen offset:{(n&3)*1024} nt lds")
    ops.append(f)
def fw2():
    A("s_cmp_eq_u32 s30, 7"); A("s_cbranch_scc1 L_w2zero")
    A("s_mov_b32 m0, s33"); nop(1)
    A("buffer_load_dwordx4 v10, s[52:55], s32 offen nt lds")
    A("s_branch L_w2done")
    LB("L_w2zero")
    for i in range(4): A(f"v_mov_b32 v{116+i}, 0")
    A(f"v_lshlrev_b32 v11, 4, v2"); A(f"v_add_u32 v11, {LW2 + 7168}, v11")
    A("ds_write_b128 v11, v[116:119]")
    A("buffer_load_dwordx4 v[116:119], v10, s[52:55], 0 offen")
    LB("L_w2done")
ops.append(fw2)
for n in range(8):
    def f(n=n): A(f"buffer_load_dwordx4 v[{16+4*n}:{19+4*n}], v{12 if n<4 else 13}, s[12:15], s25 offen offset:{(n%4)*1024} nt")
    ops.append(f)
def fwo0():
    A("s_mov_b32 m0, s35"); nop(1); A("buffer_load_dwordx4 v14, s[44:47], s34 offen nt lds")
def fwo1():
    A("s_add_u32 m0, s35, 1024"); A("s_add_u32 s34, s34, 4096"); A("buffer_load_dwordx4 v14, s[44:47], s34 offen nt lds")
ops += [fwo0, fwo1]
A("s_barrier")
for i, f in enumerate(ops):
    if i >= DEPTH: A(f"s_waitcnt vmcnt({DEPTH-1})")
    if i == 9 + DEPTH - 0 and False: pass
    if i == 8 + DEPTH + 1 - 0: pass
    if i == 9 + DEPTH - 1 + 0 and False: pass
    if i == 8 + DEPTH:
        lds_inc(16); stamp(1)
    f()
if "--bulkonly" in sys.argv:
    A("s_waitcnt vmcnt(0)"); stamp(4)
    A("s_cmp_lg_u32 s30, 0"); A("s_cbranch_scc1 L_end"); stamp_flush(256); A("s_endpgm")
C("wait P, build B operands")
lds_wait(20, 4)
stamp(2)
A("v_lshrrev_b32 v5, 3, v3"); A("v_lshlrev_b32 v5, 7, v5"); A("v_lshl_add_u32 v5, v4, 5, v5")
A("s_lshl_b32 s33, s30, 9"); A(f"s_add_u32 s33, s33, {LP}"); A("v_add_u32 v5, s33, v5")
A("ds_read_b128 v[80:83], v5"); A("ds_read_b128 v[84:87], v5 offset:16")
A("ds_read_b128 v[88:91], v5 offset:256"); A("ds_read_b128 v[92:95], v5 offset:272")
for i in range(8): A(f"v_mov_b32 v{96+i}, 0")
A("s_waitcnt lgkmcnt(0)")
stamp(3)
C("PV")
for i in range(8):
    base = 48 + (i & 3) * 8
    for hp in range(2):
        for q in range(4): A(f"v_and_b32 v{base+4*hp+q}, v{80+8*hp+i}, v{112+q}")
    A(f"s_waitcnt vmcnt({7-i+2})")
    for hp in range(2):
        A(f"v_mfma_f32_16x16x32_bf16 v[{96+4*hp}:{99+4*hp}], v[{16+4*i}:{19+4*i}], v[{base+4*hp}:{base+4*hp+3}], v[{96+4*hp}:{99+4*hp}]")
A("s_lshl_b32 s33, s30, 11"); A(f"s_add_u32 s33, s33, {LORED}"); A("v_lshlrev_b32 v9, 4, v2"); A("v_add_u32 v9, s33, v9")
nop(8)
A("ds_write_b128 v9, v[96:99]"); A("ds_write_b128 v9, v[100:103] offset:1024")
A("s_waitcnt vmcnt(0)")
stamp(4)
bbar()
stamp(5)
A("v_lshrrev_b32 v10, 2, v3"); A("v_lshl_add_u32 v10, v4, 3, v10"); A("v_lshlrev_b32 v10, 8, v10")
A("v_and_b32 v11, 3, v3"); A("v_lshl_add_u32 v10, v11, 3, v10")
A("s_lshl_b32 s33, s30, 5"); A(f"s_add_u32 s33, s33, {LWO}"); A("v_add_u32 v10, s33, v10")
A("s_cmp_ge_u32 s30, 2"); A("s_cbranch_scc1 L_nored")
A("s_lshl_b32 s33, s30, 10"); A("v_lshlrev_b32 v9, 4, v2"); A("v_add_u32 v9, s33, v9")
A(f"v_add_u32 v5, {LORED}, v9")
for w in range(8): A(f"ds_read_b128 v[{48+4*w}:{51+4*w}], v5 offset:{w*2048}")
A(f"s_lshl_b32 s33, s2, 12"); A(f"s_add_u32 s33, s33, {WOB}"); A("v_add_u32 v9, s33, v9")
A("s_waitcnt lgkmcnt(0)")
for q in range(4):
    A(f"v_add_f32 v{48+q}, v{48+q}, v{52+q}"); A(f"v_add_f32 v{56+q}, v{56+q}, v{60+q}"); A(f"v_add_f32 v{64+q}, v{64+q}, v{68+q}"); A(f"v_add_f32 v{72+q}, v{72+q}, v{76+q}")
for q in range(4):
    A(f"v_add_f32 v{48+q}, v{48+q}, v{56+q}"); A(f"v_add_f32 v{64+q}, v{64+q}, v{72+q}")
for q in range(4): A(f"v_add_f32 v{48+q}, v{48+q}, v{64+q}")
for q in range(4): guard(48+q)
A("global_store_dwordx4 v9, v[48:51], s[88:89] sc1")
A("s_branch L_nostat")
LB("L_nored")
A("s_cmp_lg_u32 s30, 2"); A("s_cbranch_scc1 L_nostat")
A("v_and_b32 v15, 7, v2"); A("v_lshrrev_b32 v5, 1, v15"); A("v_lshlrev_b32 v5, 4, v5"); A("v_and_b32 v6, 1, v15"); A("v_lshl_add_u32 v5, v6, 7, v5"); A(f"v_add_u32 v5, {LMX}, v5")
A("ds_read_b128 v[56:59], v5"); A("s_waitcnt lgkmcnt(0)")
A("v_max3_f32 v8, v56, v57, v58"); A("v_max_f32 v8, v8, v59")
A("v_add_f32 v66, v56, v57"); A("v_add_f32 v66, v66, v58"); A("v_add_f32 v66, v66, v59")
A("v_cmp_eq_u32 vcc, 0, v6"); nop(2); A("v_cndmask_b32 v66, v66, v8, vcc")
guard(66)
A(f"s_lshl_b32 s33, s2, 12"); A(f"s_add_u32 s33, s33, {WOB + 2048}"); A(f"v_lshlrev_b32 v7, 2, v2"); A("v_add_u32 v7, s33, v7")
A("v_cmp_gt_u32 vcc, 8, v2"); A("s_and_saveexec_b64 s[36:37], vcc"); A("global_store_dword v7, v66, s[88:89] sc1"); A("s_mov_b64 exec, s[36:37]")
LB("L_nostat")
for s_ in range(2):
    A(f"ds_read_b64_tr_b16 v[{104+4*s_}:{105+4*s_}], v10 offset:{s_*8192}")
    A(f"ds_read_b64_tr_b16 v[{106+4*s_}:{107+4*s_}], v10 offset:{s_*8192+1024}")
C("combine")
A("s_lshl_b32 s33, s30, 5"); A("s_add_u32 s33, s33, s20"); A("s_lshl_b32 s33, s33, 12"); A(f"s_add_u32 s33, s33, {WOB}")
A("v_lshrrev_b32 v5, 5, v2"); A("v_lshlrev_b32 v5, 6, v5")
A("v_and_b32 v6, 7, v2"); A("v_lshl_add_u32 v5, v6, 2, v5")
A("v_bfe_u32 v6, v2, 3, 2"); A("v_add_u32 v5, v5, v6"); A("v_lshlrev_b32 v5, 2, v5")
A("s_lshr_b32 s34, s22, 2"); A("s_lshl_b32 s34, s34, 10")
A("s_and_b32 s35, s22, 1"); A("s_lshl_b32 s35, s35, 9"); A("s_add_u32 s34, s34, s35")
A("s_bfe_u32 s35, s22, 0x10001"); A("s_lshl_b32 s35, s35, 7"); A("s_add_u32 s34, s34, s35")
A("s_add_u32 s34, s34, s33"); A("v_add_u32 v5, s34, v5")
A("s_lshr_b32 s34, s22, 1"); A("s_lshl_b32 s34, s34, 3"); A("s_add_u32 s34, s34, s33"); A("s_add_u32 s34, s34, 2048"); A("v_mov_b32 v6, s34")
for c in range(1, 4):
    A(f"v_add_u32 v{68+c}, {c*0x8000}, v5"); A(f"v_add_u32 v{72+c}, {c*0x8000}, v6")
A("v_mov_b32 v68, v5"); A("v_mov_b32 v72, v6")
lds_wait(12, 1)
spin_head("L_po")
for c in range(4): A(f"global_load_dword v{48+c}, v{68+c}, s[88:89] sc1")
for c in range(4): A(f"global_load_dwordx2 v[{76+2*c}:{77+2*c}], v{72+c}, s[88:89] sc1")
A("s_waitcnt vmcnt(0)")
chk_empty([48, 49, 50, 51] + list(range(76, 84)))
spin_tail("L_po", "L_po_done")
stamp(6)
A("v_max3_f32 v8, v76, v78, v80"); A("v_max_f32 v8, v8, v82")
for c in range(4):
    m = 76+2*c
    A(f"v_sub_f32 v{m}, v{m}, v8"); A(f"v_mul_f32 v{m}, 0x3fb8aa3b, v{m}"); A(f"v_exp_f32 v{m}, v{m}")
nop(1)
A("v_mul_f32 v9, v76, v77"); A("v_fmac_f32 v9, v78, v79"); A("v_fmac_f32 v9, v80, v81"); A("v_fmac_f32 v9, v82, v83")
A("v_rcp_f32 v9, v9")
A("v_mul_f32 v48, v48, v76"); A("v_fmac_f32 v48, v49, v78"); A("v_fmac_f32 v48, v50, v80"); A("v_fmac_f32 v48, v51, v82")
A("v_mul_f32 v48, v48, v9")
A("v_cvt_pk_bf16_f32 v48, v48, v48")
A(f"s_mul_i32 s33, s30, {HPITCH}"); A(f"s_add_u32 s33, s33, {LO}"); A("v_lshlrev_b32 v6, 1, v2"); A("v_add_u32 v6, s33, v6")
A("ds_write_b16 v6, v48")
A("v_and_b32 v6, 7, v3"); A(f"v_mul_u32_u24 v6, {HPITCH}, v6"); A("v_lshl_add_u32 v6, v4, 4, v6"); A(f"v_add_u32 v6, {LO}, v6")
for i in range(4): A(f"v_mov_b32 v{56+i}, 0")
A("s_lshl_b32 s33, s30, 9"); A(f"s_add_u32 s33, s33, {LORED + 16384}")
A("v_lshlrev_b32 v7, 8, v4"); A("v_lshl_add_u32 v7, v3, 2, v7"); A("v_add_u32 v7, s33, v7")
A("v_lshlrev_b32 v8, 4, v2"); A("v_add_u32 v8, s33, v8")
A("v_lshrrev_b32 v5, 2, v2"); A("v_lshlrev_b32 v5, 9, v5"); A("v_and_b32 v9, 3, v2"); A("v_lshl_add_u32 v5, v9, 4, v5")
A("s_lshl_b32 s33, s2, 12"); A("s_lshl_b32 s34, s30, 6"); A("s_add_u32 s33, s33, s34"); A(f"s_add_u32 s33, s33, {WSB}"); A("v_add_u32 v5, s33, v5")
bbar()
A("ds_read_b128 v[48:51], v6"); A("ds_read_b128 v[52:55], v6 offset:64")
A("s_waitcnt lgkmcnt(0)")
A("v_mfma_f32_16x16x32_bf16 v[56:59], v[48:51], v[104:107], v[56:59]")
A("v_mfma_f32_16x16x32_bf16 v[56:59], v[52:55], v[108:111], v[56:59]")
nop(10)
for r in range(4): guard(56+r)
A("v_cmp_gt_u32 vcc, 32, v2"); A("s_and_saveexec_b64 s[36:37], vcc")
for r in range(4): A(f"ds_write_b32 v7, v{56+r} offset:{r*64}")
A("ds_read_b128 v[60:63], v8"); A("s_waitcnt lgkmcnt(0)")
A("global_store_dwordx4 v5, v[60:63], s[88:89] sc1")
stamp(7)
if STAMPS:
    A("s_cmp_lg_u32 s30, 0"); A("s_cbranch_scc1 L_end")
    stamp_flush(256)
A("s_endpgm")

LB("L_ctrl")
C("control waves")
stamp(0)
if "--noprio" not in sys.argv: A("s_setprio 3")
A("s_sub_u32 s31, s30, 8")
A("s_cmp_lg_u32 s30, 8"); A("s_cbranch_scc1 L_n0"); A("s_cmp_lg_u32 s2, 0"); A("s_cbranch_scc1 L_n0")
A("s_memrealtime s[96:97]"); A("s_waitcnt lgkmcnt(0)"); A("s_or_b32 s96, s96, 1")
A("v_mov_b32 v12, s96"); A("v_mov_b32 v13, 0")
A("s_mov_b64 exec, 1"); A("global_store_dword v13, v12, s[86:87] sc1"); A("s_mov_b64 exec, -1")
LB("L_n0")
srd(40, 70, 0x400000); srd(48, 76, 512*1792*2)
A("v_lshrrev_b32 v5, 5, v2"); A("v_and_b32 v6, 31, v2")
A("s_lshl_b32 s32, s31, 1"); A("v_add_u32 v7, s32, v5")
A("v_lshlrev_b32 v8, 10, v7"); A("v_lshl_add_u32 v8, v6, 5, v8")
A("global_load_dwordx4 v[40:43], v8, s[64:65]"); A("global_load_dwordx4 v[44:47], v8, s[64:65] offset:16")
A("s_lshr_b32 s26, s21, 3"); A("s_and_b32 s27, s21, 7"); A("s_lshl_b32 s28, s20, 3"); A("s_add_u32 s27, s27, s28")
A("v_lshrrev_b32 v9, 3, v2"); A("v_and_b32 v10, 7, v2"); A("v_lshlrev_b32 v11, 13, v9"); A("v_lshl_add_u32 v11, v10, 4, v11")
A("s_lshl_b32 s32, s26, 7"); A("s_lshl_b32 s33, s31, 5"); A("s_add_u32 s32, s32, s33"); A("s_lshl_b32 s32, s32, 13")
A("s_lshl_b32 s33, s27, 7"); A("s_add_u32 s32, s32, s33")
A("s_lshl_b32 s34, s31, 12"); A(f"s_add_u32 s35, s34, {LWQ}")
for n in range(4):
    A(f"s_add_u32 m0, s35, {n*1024}"); A(f"s_add_u32 s33, s32, {n*8*8192}")
    A("buffer_load_dwordx4 v11, s[40:43], s33 offen nt lds")
A("s_mul_i32 s28, s20, 14"); A("s_add_u32 s28, s28, s21"); A("s_lshr_b32 s29, s28, 2"); A("s_and_b32 s28, s28, 3")
A("s_cmp_ge_u32 s21, 14"); A("s_cbranch_scc1 L_now1")
A("v_mul_u32_u24 v11, 3584, v9"); A("v_lshl_add_u32 v11, v10, 4, v11")
A("s_lshl_b32 s32, s28, 7"); A("s_lshl_b32 s33, s31, 5"); A("s_add_u32 s32, s32, s33"); A("s_mul_i32 s32, s32, 3584")
A("s_lshl_b32 s33, s29, 7"); A("s_add_u32 s32, s32, s33")
A(f"s_add_u32 s35, s34, {LW1}")
for n in range(4):
    A(f"s_add_u32 m0, s35, {n*1024}"); A(f"s_add_u32 s33, s32, {n*8*3584}")
    A("buffer_load_dwordx4 v11, s[48:51], s33 offen nt lds")
LB("L_now1")
A("v_mov_b32 v60, 0")
A("global_load_dword v61, v60, s[86:87] sc1")
for i in range(4): A(f"v_mov_b32 v{12+i}, -1")
A("v_lshlrev_b32 v16, 4, v2")
A("s_cmp_eq_u32 s31, 0"); A("s_cbranch_scc0 L_cl1")
A(f"s_lshl_b32 s32, s2, 12"); A(f"s_add_u32 s32, s32, {WOB}"); A("v_add_u32 v17, s32, v16")
A("global_store_dwordx4 v17, v[12:15], s[88:89] sc1"); A("global_store_dwordx4 v17, v[12:15], s[88:89] offset:1024 sc1")
A("s_mov_b64 exec, 0xf"); A("global_store_dwordx4 v17, v[12:15], s[88:89] offset:2048 sc1"); A("s_mov_b64 exec, -1")
A("s_branch L_cldone")
LB("L_cl1")
A("s_cmp_eq_u32 s31, 3"); A("s_cbranch_scc1 L_cl3")
A(f"s_lshl_b32 s32, s2, 12"); A("s_sub_u32 s33, s31, 1"); A("s_lshl_b32 s33, s33, 11"); A("s_add_u32 s32, s32, s33"); A(f"s_add_u32 s32, s32, {WSB}"); A("v_add_u32 v17, s32, v16")
A("global_store_dwordx4 v17, v[12:15], s[88:89] sc1"); A("global_store_dwordx4 v17, v[12:15], s[88:89] offset:1024 sc1")
A("s_branch L_cldone")
LB("L_cl3")
A(f"s_lshl_b32 s32, s2, 11"); A(f"s_add_u32 s32, s32, {WYB}"); A("v_add_u32 v17, s32, v16")
A("global_store_dwordx4 v17, v[12:15], s[88:89] sc1"); A("global_store_dwordx4 v17, v[12:15], s[88:89] offset:1024 sc1")
LB("L_cldone")
for i in range(4): A(f"v_mov_b32 v{12+i}, 0")
A("v_lshrrev_b32 v17, 5, v2"); A("s_lshl_b32 s32, s31, 1"); A("v_add_u32 v17, s32, v17"); A("v_lshlrev_b32 v17, 15, v17")
A("v_and_b32 v18, 31, v2"); A("v_lshl_add_u32 v17, v18, 4, v17")
A(f"s_lshl_b32 s32, s26, 18"); A("s_lshl_b32 s33, s27, 9"); A("s_add_u32 s32, s32, s33"); A(f"s_add_u32 s32, s32, {WQP}"); A("v_add_u32 v19, s32, v17")
A("global_store_dwordx4 v19, v[12:15], s[88:89] sc1")
A("s_cmp_ge_u32 s21, 14"); A("s_cbranch_scc1 L_pt2")
A("v_lshrrev_b32 v17, 5, v2"); A("s_lshl_b32 s32, s31, 1"); A("v_add_u32 v17, s32, v17"); A("v_mul_u32_u24 v17, 14336, v17")
A("v_lshl_add_u32 v17, v18, 4, v17")
A(f"s_mul_i32 s32, s28, {8*14336}"); A("s_lshl_b32 s33, s29, 9"); A("s_add_u32 s32, s32, s33"); A(f"s_add_u32 s32, s32, {WHP}"); A("v_add_u32 v19, s32, v17")
A("global_store_dwordx4 v19, v[12:15], s[88:89] sc1")
LB("L_pt2")
A("s_cmp_lg_u32 s31, 0"); A("s_cbranch_scc1 L_n1")
A("ds_write_b128 v125, v[12:15]"); A("ds_write_b128 v125, v[12:15] offset:16")
LB("L_n1")
A("s_waitcnt lgkmcnt(0)")
A("s_barrier")
C("LN")
A("s_waitcnt vmcnt(0)")
stamp(1)
if "--bulkonly" in sys.argv:
    A("s_cmp_lg_u32 s31, 0"); A("s_cbranch_scc1 L_end"); stamp_flush(0); A("s_endpgm")
for i in range(8):
    A(f"v_lshlrev_b32 v{16+2*i}, 16, v{40+i}"); A(f"v_and_b32 v{17+2*i}, 0xffff0000, v{40+i}")
A("v_add_f32 v32, v16, v17")
for i in range(2, 16): A(f"v_add_f32 v32, v32, v{16+i}")
allred32(32, 33)
A("v_mul_f32 v32, 0x3b000000, v32")
A("v_sub_f32 v34, v16, v32"); A("v_mul_f32 v33, v34, v34")
for i in range(1, 16):
    A(f"v_sub_f32 v34, v{16+i}, v32"); A("v_fmac_f32 v33, v34, v34")
allred32(33, 34)
A("v_mul_f32 v33, 0x3b000000, v33")
rnd1(32); rnd1(33)
A("v_add_f32 v33, 0x3727c5ac, v33"); rnd1(33)
A("v_sqrt_f32 v33, v33"); nop(1); rnd1(33)
A("v_rcp_f32 v33, v33"); nop(1)
for i in range(0, 16, 2):
    a, b = 16+i, 17+i
    A(f"v_sub_f32 v{a}, v{a}, v32"); A(f"v_sub_f32 v{b}, v{b}, v32")
    A(f"v_cvt_pk_bf16_f32 v34, v{a}, v{b}")
    A(f"v_lshlrev_b32 v{a}, 16, v34"); A(f"v_and_b32 v{b}, 0xffff0000, v34")
    A(f"v_mul_f32 v{a}, v{a}, v33"); A(f"v_mul_f32 v{b}, v{b}, v33")
    A(f"v_cvt_pk_bf16_f32 v{40+i//2}, v{a}, v{b}")
A(f"v_mul_u32_u24 v8, {XNP}, v7"); A("v_lshl_add_u32 v8, v6, 5, v8"); A(f"v_add_u32 v8, {LXN}, v8")
A("ds_write_b128 v8, v[40:43]"); A("ds_write_b128 v8, v[44:47] offset:16")
A("v_mov_b32 v13, 0"); A("v_mov_b32 v12, v61")
A("v_cmp_ne_u32 vcc, 0, v12"); A("s_cbranch_vccnz L_pn_done")
spin_head("L_pn")
A("global_load_dword v12, v13, s[86:87] sc1"); A("s_waitcnt vmcnt(0)")
A("v_cmp_eq_u32 vcc, 0, v12")
spin_tail("L_pn", "L_pn_done", sleep=1)
A("v_readfirstlane_b32 s95, v12")
cbar()
A("s_cmp_lg_u32 s31, 3"); A("s_cbranch_scc1 L_nf")
A("v_mov_b32 v12, 1"); A("v_mov_b32 v13, s95"); A(f"s_lshl_b32 s32, s2, 3"); A(f"s_add_u32 s32, s32, {WFL}"); A("v_mov_b32 v14, s32")
A("s_mov_b64 exec, 1"); A("global_store_dwordx2 v14, v[12:13], s[88:89] sc1"); A("s_mov_b64 exec, -1")
LB("L_nf")
stamp(2)
C("jobs")
def job(lw, skg, wsbase, rowpitch, scg):
    A("v_and_b32 v5, 7, v3"); A(f"v_mul_u32_u24 v5, {XNP}, v5"); A("v_lshl_add_u32 v5, v4, 4, v5")
    A(f"s_lshl_b32 s32, s{skg}, 8"); A(f"s_add_u32 s32, s32, {LXN}"); A("v_add_u32 v5, s32, v5")
    for s in range(4): A(f"ds_read_b128 v[{16+4*s}:{19+4*s}], v5 offset:{s*64}")
    A("v_lshrrev_b32 v6, 2, v3"); A("v_lshl_add_u32 v6, v4, 3, v6"); A("v_lshlrev_b32 v6, 7, v6")
    A("v_and_b32 v7, 3, v3"); A("v_lshl_add_u32 v6, v7, 3, v6")
    A("s_lshl_b32 s32, s31, 5"); A(f"s_add_u32 s32, s32, {lw}"); A("v_add_u32 v6, s32, v6")
    for s in range(4):
        A(f"ds_read_b64_tr_b16 v[{32+4*s}:{33+4*s}], v6 offset:{s*4096}")
        A(f"ds_read_b64_tr_b16 v[{34+4*s}:{35+4*s}], v6 offset:{s*4096+512}")
    for i in range(4): A(f"v_mov_b32 v{48+i}, 0")
    for r in range(4): A(f"v_mov_b32 v{53+2*r}, s95")
    A(f"v_mul_u32_u24 v7, {4*rowpitch}, v4"); A("v_lshl_add_u32 v7, v3, 3, v7")
    A(f"s_mul_i32 s32, s{skg}, {8*rowpitch}"); A(f"s_lshl_b32 s33, s{scg}, 9"); A("s_add_u32 s32, s32, s33"); A("s_lshl_b32 s33, s31, 7"); A("s_add_u32 s32, s32, s33")
    A(f"s_add_u32 s32, s32, {wsbase}"); A("v_add_u32 v7, s32, v7")
    A("s_waitcnt lgkmcnt(0)")
    for s in range(4):
        A(f"v_mfma_f32_16x16x32_bf16 v[48:51], v[{16+4*s}:{19+4*s}], v[{32+4*s}:{35+4*s}], v[48:51]")
    nop(10)
    for r in range(4): A(f"v_mov_b32 v{52+2*r}, v{48+r}")
    A("v_cmp_gt_u32 vcc, 32, v2"); A("s_and_saveexec_b64 s[36:37], vcc")
    for r in range(4):
        A(f"v_add_u32 v8, {r*rowpitch}, v7"); A(f"global_store_dwordx2 v8, v[{52+2*r}:{53+2*r}], s[88:89] sc1")
    A("s_mov_b64 exec, s[36:37]")
job(LWQ, 26, WQP, 32768, 27)
A("s_cmp_ge_u32 s21, 14"); A("s_cbranch_scc1 L_noh")
job(LW1, 28, WHP, 14336, 29)
LB("L_noh")
stamp(3)
A("s_cmp_ge_u32 s31, 2"); A("s_cbranch_scc1 L_sph")
C("q gather (waves 0,1): sentinel then full")
A("v_and_b32 v5, 31, v2"); A("v_lshrrev_b32 v6, 3, v5"); A("v_and_b32 v7, 7, v5")
A("v_lshlrev_b32 v6, 18, v6"); A("v_lshl_add_u32 v6, v7, 9, v6")
A(f"s_lshl_b32 s32, s22, 15"); A("s_lshl_b32 s33, s20, 12"); A("s_add_u32 s32, s32, s33"); A(f"s_add_u32 s32, s32, {WQP}")
A("s_lshl_b32 s33, s31, 8"); A("s_add_u32 s33, s33, s32"); A("s_add_u32 s33, s33, 248"); A("v_add_u32 v6, s33, v6")
spin_head("L_sq")
A("global_load_dwordx2 v[16:17], v6, s[88:89] sc1"); A("s_waitcnt vmcnt(0)")
A("v_cmp_ne_u32 vcc, s95, v17")
spin_tail("L_sq", "L_sq_done", sleep=2)
A("s_lshl_b32 s33, s31, 6"); A("v_add_u32 v5, s33, v2")
A("v_lshlrev_b32 v6, 5, v5"); A("v_add_u32 v6, s32, v6")
for kg in range(1, 4): A(f"v_add_u32 v{8+kg}, {kg*262144}, v6")
A("v_mov_b32 v8, v6")
spin_head("L_pq")
for kg in range(4):
    A(f"global_load_dwordx4 v[{16+8*kg}:{19+8*kg}], v{8+kg}, s[88:89] sc1")
    A(f"global_load_dwordx4 v[{20+8*kg}:{23+8*kg}], v{8+kg}, s[88:89] offset:16 sc1")
A("s_waitcnt vmcnt(0)")
chk_tags([17+2*i for i in range(16)])
spin_tail("L_pq", "L_pq_done", sleep=2)
for i in range(4):
    A(f"v_add_f32 v{16+2*i}, v{16+2*i}, v{24+2*i}"); A(f"v_add_f32 v{32+2*i}, v{32+2*i}, v{40+2*i}"); A(f"v_add_f32 v{16+2*i}, v{16+2*i}, v{32+2*i}")
A("v_cvt_pk_bf16_f32 v24, v16, v18"); A("v_cvt_pk_bf16_f32 v25, v20, v22")
A("v_lshlrev_b32 v6, 3, v5"); A(f"v_add_u32 v6, {LQ}, v6"); A("ds_write_b64 v6, v[24:25]")
lds_inc(24)
LB("L_sph")
stamp(4)
lds_wait(24, 2)
stamp(5)
C("S phase: control wave cw handles keys [64cw, +64) = bulk chunks w = 2cw, 2cw+1 ; tiles tt=0..3 (w = 2cw + (tt>>1), t = tt&1)")
lds_wait(16, 8)
stamp(6)
A("v_and_b32 v5, 3, v3"); A("v_lshlrev_b32 v5, 2, v5"); A("v_lshrrev_b32 v6, 2, v3"); A("v_or_b32 v5, v5, v6")
A("v_lshlrev_b32 v6, 8, v5"); A("s_lshl_b32 s32, s31, 14"); A("v_add_u32 v6, s32, v6")
for s in range(4):
    A(f"v_add_u32 v7, {4*s}, v4"); A("v_xor_b32 v7, v7, v5"); A(f"v_lshl_add_u32 v{8+s}, v7, 4, v6")
for tt in range(4):
    for s in range(4):
        A(f"ds_read_b128 v[{16+16*tt+4*s}:{19+16*tt+4*s}], v{8+s} offset:{tt*4096}")
A("v_and_b32 v7, 3, v3"); A("v_lshlrev_b32 v7, 8, v7"); A(f"v_lshl_add_u32 v7, v4, 4, v7"); A(f"v_add_u32 v7, {LQ}, v7")
for s in range(4): A(f"ds_read_b128 v[{80+4*s}:{83+4*s}], v7 offset:{s*64}")
for i in range(16): A(f"v_mov_b32 v{96+i}, 0")
A("s_waitcnt lgkmcnt(0)")
for s in range(4):
    for tt in range(4):
        a = 96 + 4*tt
        A(f"v_mfma_f32_16x16x32_bf16 v[{a}:{a+3}], v[{16+16*tt+4*s}:{19+16*tt+4*s}], v[{80+4*s}:{83+4*s}], v[{a}:{a+3}]")
nop(10)
A("s_mov_b32 s34, 0x3db504f3")
for i in range(0, 16, 2):
    a, b = 96+i, 97+i
    A(f"v_cvt_pk_bf16_f32 v8, v{a}, v{b}")
    A(f"v_lshlrev_b32 v{a}, 16, v8"); A(f"v_and_b32 v{b}, 0xffff0000, v8")
    A(f"v_mul_f32 v{a}, s34, v{a}"); A(f"v_mul_f32 v{b}, s34, v{b}")
    A(f"v_cvt_pk_bf16_f32 v8, v{a}, v{b}")
    A(f"v_lshlrev_b32 v{a}, 16, v8"); A(f"v_and_b32 v{b}, 0xffff0000, v8")
A("v_max3_f32 v112, v96, v97, v98")
for i in range(99, 111, 2): A(f"v_max3_f32 v112, v112, v{i}, v{i+1}")
A("v_max_f32 v112, v112, v111")
red_g(112, 8, "v_max_f32")
A("v_and_b32 v7, 3, v3"); A("v_lshlrev_b32 v7, 4, v7")
A("s_lshl_b32 s33, s31, 2"); A(f"s_add_u32 s33, s33, {LMX}"); A("v_add_u32 v9, s33, v7")
A("ds_write_b32 v9, v112")
cbar()
A(f"v_add_u32 v9, {LMX}, v7"); A("ds_read_b128 v[16:19], v9"); A("s_waitcnt lgkmcnt(0)")
A("v_max3_f32 v112, v16, v17, v18"); A("v_max_f32 v112, v112, v19")
A("s_mov_b32 s34, 0x3fb8aa3b")
for i in range(16):
    a = 96 + i
    A(f"v_sub_f32 v{a}, v{a}, v112"); A(f"v_mul_f32 v{a}, s34, v{a}"); A(f"v_exp_f32 v{a}, v{a}")
nop(1)
A("v_add_f32 v113, v96, v97")
for i in range(98, 112): A(f"v_add_f32 v113, v113, v{i}")
red_g(113, 8, "v_add_f32")
A("s_lshl_b32 s33, s31, 2"); A(f"s_add_u32 s33, s33, {LLS}"); A("v_add_u32 v9, s33, v7")
A("ds_write_b32 v9, v113")
for i in range(16): A(f"v_cvt_pk_bf16_f32 v{96+i}, v{96+i}, v{96+i}")
A("v_and_b32 v7, 3, v3"); A("v_lshlrev_b32 v7, 7, v7"); A("v_lshl_add_u32 v7, v4, 5, v7")
A("s_lshl_b32 s33, s31, 10"); A(f"s_add_u32 s33, s33, {LP}"); A("v_add_u32 v7, s33, v7")
A("v_cmp_gt_u32 vcc, 4, v3"); A("s_and_saveexec_b64 s[36:37], vcc")
for tt in range(4):
    A(f"ds_write_b128 v7, v[{96+4*tt}:{99+4*tt}] offset:{(tt>>1)*512 + (tt&1)*16}")
A("s_mov_b64 exec, s[36:37]")
lds_inc(20)
stamp(7)
A("s_cmp_lt_u32 s31, 2"); A("s_cbranch_scc1 L_nohg")
LB("L_hg")
C("h gather (waves 2,3)")
A("v_and_b32 v5, 3, v2"); A("v_mul_u32_u24 v5, 114688, v5"); A("v_bfe_u32 v6, v2, 2, 1"); A("v_mul_u32_u24 v6, 440, v6"); A("v_add_u32 v5, v5, v6")
A("s_mul_i32 s32, s21, 448"); A(f"s_add_u32 s32, s32, {WHP + 7*14336}"); A("v_add_u32 v5, s32, v5")
spin_head("L_sh")
A("global_load_dwordx2 v[16:17], v5, s[88:89] sc1"); A("s_waitcnt vmcnt(0)")
A("v_cmp_ne_u32 vcc, s95, v17")
spin_tail("L_sh", "L_sh_done", sleep=2)
A("s_sub_u32 s32, s31, 2"); A("s_lshl_b32 s32, s32, 6"); A("v_add_u32 v5, s32, v2")
A("v_lshrrev_b32 v6, 4, v5"); A("v_and_b32 v7, 15, v5")
A("v_min_u32 v8, 13, v7")
A("v_mul_u32_u24 v9, 14336, v6"); A("v_lshl_add_u32 v9, v8, 5, v9")
A("s_mul_i32 s32, s21, 448"); A(f"s_add_u32 s32, s32, {WHP}"); A("v_add_u32 v9, s32, v9")
A("s_mul_i32 s32, s21, 112"); A("v_lshlrev_b32 v10, 3, v8"); A("v_add_u32 v10, s32, v10")
A("global_load_dwordx2 v[52:53], v10, s[78:79]")
for kg in range(4): A(f"v_add_u32 v{10+kg}, {kg*8*14336}, v9")
spin_head("L_ph")
for kg in range(4):
    A(f"global_load_dwordx4 v[{16+8*kg}:{19+8*kg}], v{10+kg}, s[88:89] sc1")
    A(f"global_load_dwordx4 v[{20+8*kg}:{23+8*kg}], v{10+kg}, s[88:89] offset:16 sc1")
A("s_waitcnt vmcnt(0)")
chk_tags([17+2*i for i in range(16)])
spin_tail("L_ph", "L_ph_done", sleep=2)
for i in range(4):
    A(f"v_add_f32 v{16+2*i}, v{16+2*i}, v{24+2*i}"); A(f"v_add_f32 v{32+2*i}, v{32+2*i}, v{40+2*i}"); A(f"v_add_f32 v{16+i}, v{16+2*i}, v{32+2*i}")
    rnd1(16+i)
A("v_lshlrev_b32 v20, 16, v52"); A("v_and_b32 v21, 0xffff0000, v52"); A("v_lshlrev_b32 v22, 16, v53"); A("v_and_b32 v23, 0xffff0000, v53")
A("s_mov_b32 s32, 0x3d372713"); A("s_mov_b32 s33, 0x40135761")
for i in range(4):
    x = 16+i
    A(f"v_add_f32 v{x}, v{x}, v{20+i}"); rnd1(x)
    A(f"v_mul_f32 v24, v{x}, v{x}"); A(f"v_mul_f32 v24, s32, v24"); A(f"v_fma_f32 v24, v24, v{x}, v{x}")
    A(f"v_mul_f32 v24, s33, v24"); A("v_exp_f32 v24, v24"); nop(1)
    A("v_add_f32 v24, 1.0, v24"); A("v_rcp_f32 v24, v24"); nop(1)
    A("v_fma_f32 v24, v24, -2.0, 1.0")
    A("v_add_f32 v24, 1.0, v24"); A(f"v_mul_f32 v24, v24, v{x}"); A(f"v_mul_f32 v{x}, 0.5, v24")
A("v_cvt_pk_bf16_f32 v20, v16, v17"); A("v_cvt_pk_bf16_f32 v21, v18, v19")
A("v_cmp_gt_u32 vcc, 14, v7"); nop(2); A("v_cndmask_b32 v20, 0, v20, vcc"); A("v_cndmask_b32 v21, 0, v21, vcc")
A(f"v_mul_u32_u24 v9, {HPITCH}, v6"); A("v_lshl_add_u32 v9, v7, 3, v9"); A(f"v_add_u32 v9, {LH}, v9")
A("ds_write_b64 v9, v[20:21]")
lds_inc(28)
LB("L_nohg")
C("wave 1: flags")
A("s_cmp_lg_u32 s31, 1"); A("s_cbranch_scc1 L_nfl")
A(f"v_lshlrev_b32 v7, 5, v2"); A(f"v_add_u32 v7, {WFL}, v7")
spin_head("L_pfl")
A("global_load_dwordx4 v[16:19], v7, s[88:89] sc1"); A("global_load_dwordx4 v[20:23], v7, s[88:89] offset:16 sc1"); A("s_waitcnt vmcnt(0)")
chk_tags([17, 19, 21, 23])
spin_tail("L_pfl", "L_pfl_done", sleep=2)
A("v_mov_b32 v16, 1"); A("ds_write_b32 v125, v16 offset:12")
LB("L_nfl")
C("FFN2 (W2 landed: K-landed counter covers ops 0..8)")
lds_wait(28, 2)
A("v_and_b32 v5, 7, v3"); A(f"v_mul_u32_u24 v5, {HPITCH}, v5"); A("v_lshl_add_u32 v5, v4, 4, v5"); A(f"v_add_u32 v5, {LH}, v5")
A("ds_read_b128 v[16:19], v5"); A("ds_read_b128 v[20:23], v5 offset:64")
A("v_lshrrev_b32 v6, 2, v3"); A("v_lshl_add_u32 v6, v4, 3, v6"); A("v_lshlrev_b32 v6, 7, v6")
A("v_and_b32 v7, 3, v3"); A("v_lshl_add_u32 v6, v7, 3, v6")
A("s_lshl_b32 s32, s31, 5"); A(f"s_add_u32 s32, s32, {LW2}"); A("v_add_u32 v6, s32, v6")
for s in range(2):
    A(f"ds_read_b64_tr_b16 v[{32+4*s}:{33+4*s}], v6 offset:{s*4096}")
    A(f"ds_read_b64_tr_b16 v[{34+4*s}:{35+4*s}], v6 offset:{s*4096+512}")
for i in range(4): A(f"v_mov_b32 v{48+i}, 0")
A("v_lshlrev_b32 v7, 10, v4"); A("v_lshl_add_u32 v7, v3, 2, v7")
A("s_lshl_b32 s32, s2, 11"); A("s_lshl_b32 s33, s31, 6"); A("s_add_u32 s32, s32, s33"); A(f"s_add_u32 s32, s32, {WYB}"); A("v_add_u32 v7, s32, v7")
A("s_waitcnt lgkmcnt(0)")
A("v_mfma_f32_16x16x32_bf16 v[48:51], v[16:19], v[32:35], v[48:51]")
A("v_mfma_f32_16x16x32_bf16 v[48:51], v[20:23], v[36:39], v[48:51]")
nop(10)
for r in range(4): guard(48+r)
A("v_cmp_gt_u32 vcc, 32, v2"); A("s_and_saveexec_b64 s[36:37], vcc")
for r in range(4): A(f"global_store_dword v7, v{48+r}, s[88:89] offset:{r*256} sc1")
A("s_mov_b64 exec, s[36:37]")
A("s_cmp_lg_u32 s31, 0"); A("s_cbranch_scc1 L_end")
C("wave 0: y -> g, then final")
lds_wait(12, 1)
A("v_lshrrev_b32 v5, 2, v2"); A("v_and_b32 v6, 3, v2")
A("v_lshlrev_b32 v7, 14, v5"); A("v_lshl_add_u32 v7, v6, 4, v7")
A("s_lshl_b32 s32, s20, 11"); A("s_lshl_b32 s33, s22, 8"); A("s_add_u32 s32, s32, s33"); A("s_lshl_b32 s33, s23, 6"); A("s_add_u32 s32, s32, s33"); A(f"s_add_u32 s32, s32, {WYB}")
A("v_add_u32 v7, s32, v7"); A("v_add_u32 v8, 0x40000, v7")
A("s_lshl_b32 s32, s20, 7"); A("s_lshl_b32 s33, s23, 5"); A("s_add_u32 s32, s32, s33"); A("v_lshlrev_b32 v9, 3, v6"); A("v_add_u32 v9, s32, v9")
A("global_load_dwordx2 v[100:101], v9, s[82:83]")
A("s_lshl_b32 s33, s22, 10"); A("v_add_u32 v10, s33, v9")
A("global_load_dwordx2 v[102:103], v10, s[64:65]")
def red16(regs):
    for r in regs: dpp_add(r, "row_shr:4")
    for r in regs: dpp_add(r, "row_shr:8")
    for r in regs: red_g(r, 11, "v_add_f32")
spin_head("L_py")
A("global_load_dwordx4 v[16:19], v7, s[88:89] sc1"); A("global_load_dwordx4 v[20:23], v8, s[88:89] sc1"); A("s_waitcnt vmcnt(0)")
chk_empty(list(range(16, 24)))
spin_tail("L_py", "L_py_done", sleep=2)
stamp(8)
for i in range(4): A(f"v_add_f32 v{104+i}, v{16+i}, v{20+i}")
red16([104, 105, 106, 107])
A("v_lshlrev_b32 v20, 16, v100"); A("v_and_b32 v21, 0xffff0000, v100"); A("v_lshlrev_b32 v22, 16, v101"); A("v_and_b32 v23, 0xffff0000, v101")
for i in range(4):
    x = 104+i
    rnd1(x); A(f"v_add_f32 v{x}, v{x}, v{20+i}"); rnd1(x)
    A(f"v_mul_f32 v24, 0xbfb8aa3b, v{x}"); A("v_exp_f32 v24, v24"); nop(1); A("v_add_f32 v24, 1.0, v24"); A("v_rcp_f32 v24, v24"); nop(1)
    A(f"v_mul_f32 v{x}, v{x}, v24"); rnd1(x)
A("v_and_b32 v7, 7, v5"); A("v_lshrrev_b32 v8, 3, v5"); A("v_lshl_add_u32 v7, v8, 5, v7")
A("v_lshlrev_b32 v7, 12, v7"); A("v_lshl_add_u32 v7, v6, 4, v7")
A("s_lshr_b32 s32, s20, 1"); A("s_lshl_b32 s32, s32, 15")
A("s_lshl_b32 s33, s22, 9"); A("s_add_u32 s32, s32, s33")
A("s_and_b32 s33, s20, 1"); A("s_lshl_b32 s33, s33, 2"); A("s_add_u32 s33, s33, s23"); A("s_lshl_b32 s33, s33, 6"); A("s_add_u32 s32, s32, s33")
A(f"s_add_u32 s32, s32, {WSB}"); A("v_add_u32 v108, s32, v7")
for i in range(1, 4): A(f"v_add_u32 v{108+i}, {i*64*4096}, v108")
stamp(9)
spin_head("L_pz")
for i in range(4): A(f"global_load_dwordx4 v[{16+4*i}:{19+4*i}], v{108+i}, s[88:89] sc1")
A("s_waitcnt vmcnt(0)")
chk_empty(list(range(16, 32)))
spin_tail("L_pz", "L_pz_done", sleep=1)
stamp(11)
for i in range(4):
    A(f"v_add_f32 v{16+i}, v{16+i}, v{20+i}"); A(f"v_add_f32 v{24+i}, v{24+i}, v{28+i}"); A(f"v_add_f32 v{112+i}, v{16+i}, v{24+i}")
red16([112, 113, 114, 115])
A("v_lshlrev_b32 v20, 16, v102"); A("v_and_b32 v21, 0xffff0000, v102"); A("v_lshlrev_b32 v22, 16, v103"); A("v_and_b32 v23, 0xffff0000, v103")
for i in range(4):
    x = 112+i
    rnd1(x); A(f"v_mul_f32 v{x}, v{x}, v{104+i}"); rnd1(x); A(f"v_add_f32 v{x}, v{x}, v{20+i}")
A("v_cvt_pk_bf16_f32 v28, v112, v113"); A("v_cvt_pk_bf16_f32 v29, v114, v115")
A("v_cmp_le_u32 vcc, 12, v2"); A("v_cmp_gt_u32 s[36:37], 16, v2"); A("s_and_b64 vcc, vcc, s[36:37]"); A("s_and_saveexec_b64 s[36:37], vcc")
A("global_store_dwordx2 v10, v[28:29], s[84:85]")
stamp(12)
stamp_flush(0)
LB("L_end")
A("s_endpgm")
L.append('.section .rodata,"a"')
L.append(".p2align 6")
L.append(f".amdhsa_kernel {NAME}_kernel")
L.append("  .amdhsa_next_free_vgpr 128"); L.append("  .amdhsa_next_free_sgpr 102"); L.append("  .amdhsa_accum_offset 128")
L.append("  .amdhsa_group_segment_fixed_size 0"); L.append("  .amdhsa_kernarg_size 104"); L.append("  .amdhsa_user_sgpr_count 2")
L.append("  .amdhsa_user_sgpr_kernarg_segment_ptr 1"); L.append("  .amdhsa_system_sgpr_workgroup_id_x 1")
L.append(".end_amdhsa_kernel")
out = [x for x in L if x is not None]
dst = [a for a in sys.argv[1:] if not a.startswith("--")]
open(dst[0] if dst else f"cdna_kernels/{NAME}.s", "w").write("\n".join(out) + "\n")
```

```python
import sys
NAME = "recurrent_scan__sliding_block_cached__dense_activation_gelu__decode"
STAMPS = "--stamps" in sys.argv
DEPTH = 2
for a in sys.argv:
    if a.startswith("--depth="): DEPTH = int(a.split("=")[1])
L = []
def A(s): L.append("    " + s)
def LB(s): L.append(s + ":")
def C(s): L.append("    ; " + s)

LK = 0; LWQ = 65536; LW1 = 81920; LWO = 98304; LW2 = 114688; LXN = 122880; XNP = 1040
LQ = 131328; LH = 132352; HPITCH = 144; LO = 133504; LMX = 134656; LLS = 134784; LSY = 134912
LP = 135168
LORED = 65536
LDS_TOTAL = 139264
WQP = 0x0; WHP = 0x100000; WOB = 0x200000; WSB = 0x400000; WYB = 0x600000; WFL = 0x700000; WTM = 0x800000
SPIN = 4000

def nop(n):
    while n > 0:
        k = min(n, 16); A(f"s_nop {k-1}"); n -= k
def stamp(k):
    if not STAMPS: return
    A("s_memrealtime s[98:99]"); A("s_waitcnt lgkmcnt(0)")
    A(f"v_writelane_b32 v126, s98, {k}")
def stamp_flush(base):
    if not STAMPS: return
    A("s_mov_b64 exec, -1")
    A(f"s_lshl_b32 s97, s2, 9"); A(f"s_add_u32 s97, s97, {WTM + base}")
    A("v_lshlrev_b32 v127, 2, v2"); A("v_add_u32 v127, s97, v127")
    A("global_store_dword v127, v126, s[88:89]")
def srd(d, p, n):
    A(f"s_mov_b32 s{d}, s{p}"); A(f"s_mov_b32 s{d+1}, s{p+1}"); A(f"s_mov_b32 s{d+2}, {hex(n)}"); A(f"s_mov_b32 s{d+3}, 0x20000")
def dpp_add(v, ctrl, op="v_add_f32"):
    nop(2)
    bc = " bound_ctrl:0" if "shr" in ctrl else ""
    A(f"{op}_dpp v{v}, v{v}, v{v} {ctrl} row_mask:0xf bank_mask:0xf{bc}")
def allred32(v, t, op="v_add_f32"):
    dpp_add(v, "quad_perm:[1,0,3,2]", op); dpp_add(v, "quad_perm:[2,3,0,1]", op)
    dpp_add(v, "row_half_mirror", op); dpp_add(v, "row_mirror", op)
    A(f"v_mov_b32 v{t}, v{v}"); nop(2)
    A(f"v_permlane16_swap_b32 v{v}, v{t}"); nop(1)
    A(f"{op} v{v}, v{v}, v{t}")
def red_g(v, t, op):
    A(f"v_mov_b32 v{t}, v{v}"); nop(2)
    A(f"v_permlane16_swap_b32 v{v}, v{t}"); nop(1)
    A(f"{op} v{v}, v{v}, v{t}")
    A(f"v_mov_b32 v{t}, v{v}"); nop(2)
    A(f"v_permlane32_swap_b32 v{v}, v{t}"); nop(1)
    A(f"{op} v{v}, v{v}, v{t}")
def rnd1(v):
    A(f"v_cvt_pk_bf16_f32 v{v}, v{v}, v{v}"); A(f"v_lshlrev_b32 v{v}, 16, v{v}")
def spin_head(lbl):
    A("s_mov_b32 s96, 0"); LB(lbl)
def spin_tail(lbl, done, sleep=0):
    A(f"s_cbranch_vccz {done}")
    if sleep: A(f"s_sleep {sleep}")
    A("s_add_u32 s96, s96, 1"); A(f"s_cmp_lt_u32 s96, {SPIN}"); A(f"s_cbranch_scc1 {lbl}")
    LB(done)
def chk(regs, cmp, val):
    for i, r in enumerate(regs):
        if i == 0: A(f"v_cmp_{cmp}_u32 s[38:39], {val}, v{r}")
        else:
            A(f"v_cmp_{cmp}_u32 vcc, {val}, v{r}"); A("s_or_b64 s[38:39], s[38:39], vcc")
    A("s_mov_b64 vcc, s[38:39]")
def chk_tags(regs): chk(regs, "ne", "s95")
def chk_empty(regs): chk(regs, "eq", "-1")
def guard(v):
    if "--noguard" in sys.argv: return
    A(f"v_cmp_eq_u32 vcc, -1, v{v}"); nop(2)
    A(f"v_cndmask_b32 v{v}, v{v}, v124, vcc")
_n = [0]
def lds_inc(off):
    A("s_waitcnt lgkmcnt(0)")
    A("v_mov_b32 v123, 1")
    A("s_mov_b64 s[36:37], exec"); A("s_mov_b64 exec, 1")
    A(f"ds_add_u32 v125, v123 offset:{off}")
    A("s_mov_b64 exec, s[36:37]")
def lds_wait(off, val):
    _n[0] += 1; n = _n[0]
    spin_head(f"L_lw{n}")
    A(f"ds_read_b32 v123, v125 offset:{off}"); A("s_waitcnt lgkmcnt(0)")
    A(f"v_cmp_gt_u32 vcc, {val}, v123")
    spin_tail(f"L_lw{n}", f"L_lw{n}_d", sleep=(1 if "--lsleep" in sys.argv else 0))
_cb = [0]; _bb = [0]
def cbar():
    _cb[0] += 1; lds_inc(0); lds_wait(0, 4*_cb[0])
def bbar():
    _bb[0] += 1; lds_inc(8); lds_wait(8, 8*_bb[0])

L.append(f"; @launch grid=(256,1,1) block=(768,1,1) lds={LDS_TOTAL}")
L.append('.amdgcn_target "amdgcn-amd-amdhsa--gfx950"')
L.append(".text")
L.append(f".globl {NAME}_kernel"); L.append(".p2align 8"); L.append(f".type {NAME}_kernel,@function")
LB(f"{NAME}_kernel")
A("s_cmp_ge_u32 s2, 256"); A("s_cbranch_scc1 L_end")
A("s_load_dwordx16 s[64:79], s[0:1], 0")
A("s_load_dwordx8 s[80:87], s[0:1], 64")
A("s_load_dwordx2 s[88:89], s[0:1], 96")
if "--mapB" in sys.argv:
    A("s_lshr_b32 s20, s2, 5"); A("s_and_b32 s21, s2, 31"); A("s_lshl_b32 s2, s21, 3"); A("s_add_u32 s2, s2, s20")
    A("s_lshr_b32 s22, s21, 2"); A("s_and_b32 s23, s21, 3")
else:
    A("s_and_b32 s20, s2, 7"); A("s_lshr_b32 s21, s2, 3"); A("s_lshr_b32 s22, s21, 2"); A("s_and_b32 s23, s21, 3")
A("v_lshrrev_b32 v1, 6, v0"); A("v_and_b32 v2, 63, v0")
A("v_readfirstlane_b32 s30, v1")
A("s_lshl_b32 s24, s22, 3"); A("s_add_u32 s24, s24, s20"); A("s_lshl_b32 s24, s24, 20"); A("s_add_u32 s24, s24, 0xC0000")
A("s_lshl_b32 s25, s23, 16"); A("s_add_u32 s25, s25, s24")
A("v_and_b32 v3, 15, v2"); A("v_lshrrev_b32 v4, 4, v2")
A(f"v_mov_b32 v125, {LSY}"); A("v_mov_b32 v124, 0x7fc00000")
A("s_waitcnt lgkmcnt(0)")
A("s_cmp_ge_u32 s30, 8"); A("s_cbranch_scc1 L_ctrl")

C("bulk waves")
stamp(0)
srd(8, 66, 0x4000000); srd(12, 68, 0x4000000); srd(44, 72, 0x400000); srd(52, 80, 512*1792*2)
A("s_lshl_b32 s31, s30, 13")
A("s_add_u32 s26, s31, s25"); A("s_add_u32 s27, s26, 4096")
for nn in range(4):
    A(f"v_add_u32 v5, {4*nn}, v4"); A("v_xor_b32 v5, v5, v3"); A("v_lshlrev_b32 v5, 4, v5"); A(f"v_lshl_add_u32 v{6+nn}, v4, 8, v5")
A("v_lshrrev_b32 v10, 3, v2"); A("v_lshlrev_b32 v10, 10, v10"); A("v_and_b32 v11, 7, v2"); A("v_lshl_add_u32 v10, v11, 4, v10")
A("s_mul_i32 s32, s21, 56"); A("s_lshl_b32 s33, s30, 3"); A("s_add_u32 s32, s32, s33"); A("s_lshl_b32 s32, s32, 10")
A("s_lshl_b32 s33, s20, 7"); A("s_add_u32 s32, s32, s33")
A("s_lshl_b32 s33, s30, 10"); A(f"s_add_u32 s33, s33, {LW2}")
A("v_lshlrev_b32 v12, 4, v2"); A("v_add_u32 v12, s31, v12"); A("v_add_u32 v13, 4096, v12")
A("v_lshlrev_b32 v14, 10, v4"); A("v_lshl_add_u32 v14, v3, 4, v14")
A("s_lshl_b32 s34, s20, 9"); A("s_lshl_b32 s35, s22, 6"); A("s_add_u32 s34, s34, s35"); A("s_lshl_b32 s35, s30, 3"); A("s_add_u32 s34, s34, s35")
A("s_lshl_b32 s34, s34, 10"); A("s_lshl_b32 s35, s23, 8"); A("s_add_u32 s34, s34, s35")
A("s_lshl_b32 s35, s30, 11"); A(f"s_add_u32 s35, s35, {LWO}")
A("v_and_b32 v15, 7, v3"); A("v_and_b32 v16, 1, v15"); A("v_lshrrev_b32 v17, 1, v15")
A("v_mov_b32 v18, 0xffff"); A("v_mov_b32 v19, 0xffff0000")
A("v_cmp_eq_u32 vcc, 1, v16"); nop(2); A("v_cndmask_b32 v18, v18, v19, vcc")
for r in range(4):
    A(f"v_cmp_eq_u32 vcc, {r}, v17"); nop(2); A(f"v_cndmask_b32 v{112+r}, 0, v18, vcc")
ops = []
for n in range(8):
    def f(n=n):
        if n == 0: A("s_mov_b32 m0, s31"); nop(1)
        if n == 4: A("s_add_u32 m0, s31, 4096"); nop(1)
        A(f"buffer_load_dwordx4 v{6+(n&3)}, s[8:11], s{26 if n<4 else 27} offen offset:{(n&3)*1024} nt lds")
    ops.append(f)
def fw2():
    A("s_cmp_eq_u32 s30, 7"); A("s_cbranch_scc1 L_w2zero")
    A("s_mov_b32 m0, s33"); nop(1)
    A("buffer_load_dwordx4 v10, s[52:55], s32 offen nt lds")
    A("s_branch L_w2done")
    LB("L_w2zero")
    for i in range(4): A(f"v_mov_b32 v{116+i}, 0")
    A(f"v_lshlrev_b32 v11, 4, v2"); A(f"v_add_u32 v11, {LW2 + 7168}, v11")
    A("ds_write_b128 v11, v[116:119]")
    A("buffer_load_dwordx4 v[116:119], v10, s[52:55], 0 offen")
    LB("L_w2done")
ops.append(fw2)
for n in range(8):
    def f(n=n): A(f"buffer_load_dwordx4 v[{16+4*n}:{19+4*n}], v{12 if n<4 else 13}, s[12:15], s25 offen offset:{(n%4)*1024} nt")
    ops.append(f)
def fwo0():
    A("s_mov_b32 m0, s35"); nop(1); A("buffer_load_dwordx4 v14, s[44:47], s34 offen nt lds")
def fwo1():
    A("s_add_u32 m0, s35, 1024"); A("s_add_u32 s34, s34, 4096"); A("buffer_load_dwordx4 v14, s[44:47], s34 offen nt lds")
ops += [fwo0, fwo1]
A("s_barrier")
for i, f in enumerate(ops):
    if i >= DEPTH: A(f"s_waitcnt vmcnt({DEPTH-1})")
    if i == 9 + DEPTH - 0 and False: pass
    if i == 8 + DEPTH + 1 - 0: pass
    if i == 9 + DEPTH - 1 + 0 and False: pass
    if i == 8 + DEPTH:
        lds_inc(16); stamp(1)
    f()
if "--bulkonly" in sys.argv:
    A("s_waitcnt vmcnt(0)"); stamp(4)
    A("s_cmp_lg_u32 s30, 0"); A("s_cbranch_scc1 L_end"); stamp_flush(256); A("s_endpgm")
C("wait P, build B operands")
lds_wait(20, 4)
stamp(2)
A("v_lshrrev_b32 v5, 3, v3"); A("v_lshlrev_b32 v5, 7, v5"); A("v_lshl_add_u32 v5, v4, 5, v5")
A("s_lshl_b32 s33, s30, 9"); A(f"s_add_u32 s33, s33, {LP}"); A("v_add_u32 v5, s33, v5")
A("ds_read_b128 v[80:83], v5"); A("ds_read_b128 v[84:87], v5 offset:16")
A("ds_read_b128 v[88:91], v5 offset:256"); A("ds_read_b128 v[92:95], v5 offset:272")
for i in range(8): A(f"v_mov_b32 v{96+i}, 0")
A("s_waitcnt lgkmcnt(0)")
stamp(3)
C("PV")
for i in range(8):
    base = 48 + (i & 3) * 8
    for hp in range(2):
        for q in range(4): A(f"v_and_b32 v{base+4*hp+q}, v{80+8*hp+i}, v{112+q}")
    A(f"s_waitcnt vmcnt({7-i+2})")
    for hp in range(2):
        A(f"v_mfma_f32_16x16x32_bf16 v[{96+4*hp}:{99+4*hp}], v[{16+4*i}:{19+4*i}], v[{base+4*hp}:{base+4*hp+3}], v[{96+4*hp}:{99+4*hp}]")
A("s_lshl_b32 s33, s30, 11"); A(f"s_add_u32 s33, s33, {LORED}"); A("v_lshlrev_b32 v9, 4, v2"); A("v_add_u32 v9, s33, v9")
nop(8)
A("ds_write_b128 v9, v[96:99]"); A("ds_write_b128 v9, v[100:103] offset:1024")
A("s_waitcnt vmcnt(0)")
stamp(4)
bbar()
stamp(5)
A("v_lshrrev_b32 v10, 2, v3"); A("v_lshl_add_u32 v10, v4, 3, v10"); A("v_lshlrev_b32 v10, 8, v10")
A("v_and_b32 v11, 3, v3"); A("v_lshl_add_u32 v10, v11, 3, v10")
A("s_lshl_b32 s33, s30, 5"); A(f"s_add_u32 s33, s33, {LWO}"); A("v_add_u32 v10, s33, v10")
A("s_cmp_ge_u32 s30, 2"); A("s_cbranch_scc1 L_nored")
A("s_lshl_b32 s33, s30, 10"); A("v_lshlrev_b32 v9, 4, v2"); A("v_add_u32 v9, s33, v9")
A(f"v_add_u32 v5, {LORED}, v9")
for w in range(8): A(f"ds_read_b128 v[{48+4*w}:{51+4*w}], v5 offset:{w*2048}")
A(f"s_lshl_b32 s33, s2, 12"); A(f"s_add_u32 s33, s33, {WOB}"); A("v_add_u32 v9, s33, v9")
A("s_waitcnt lgkmcnt(0)")
for q in range(4):
    A(f"v_add_f32 v{48+q}, v{48+q}, v{52+q}"); A(f"v_add_f32 v{56+q}, v{56+q}, v{60+q}"); A(f"v_add_f32 v{64+q}, v{64+q}, v{68+q}"); A(f"v_add_f32 v{72+q}, v{72+q}, v{76+q}")
for q in range(4):
    A(f"v_add_f32 v{48+q}, v{48+q}, v{56+q}"); A(f"v_add_f32 v{64+q}, v{64+q}, v{72+q}")
for q in range(4): A(f"v_add_f32 v{48+q}, v{48+q}, v{64+q}")
for q in range(4): guard(48+q)
A("global_store_dwordx4 v9, v[48:51], s[88:89] sc1")
A("s_branch L_nostat")
LB("L_nored")
A("s_cmp_lg_u32 s30, 2"); A("s_cbranch_scc1 L_nostat")
A("v_and_b32 v15, 7, v2"); A("v_lshrrev_b32 v5, 1, v15"); A("v_lshlrev_b32 v5, 4, v5"); A("v_and_b32 v6, 1, v15"); A("v_lshl_add_u32 v5, v6, 7, v5"); A(f"v_add_u32 v5, {LMX}, v5")
A("ds_read_b128 v[56:59], v5"); A("s_waitcnt lgkmcnt(0)")
A("v_max3_f32 v8, v56, v57, v58"); A("v_max_f32 v8, v8, v59")
A("v_add_f32 v66, v56, v57"); A("v_add_f32 v66, v66, v58"); A("v_add_f32 v66, v66, v59")
A("v_cmp_eq_u32 vcc, 0, v6"); nop(2); A("v_cndmask_b32 v66, v66, v8, vcc")
guard(66)
A(f"s_lshl_b32 s33, s2, 12"); A(f"s_add_u32 s33, s33, {WOB + 2048}"); A(f"v_lshlrev_b32 v7, 2, v2"); A("v_add_u32 v7, s33, v7")
A("v_cmp_gt_u32 vcc, 8, v2"); A("s_and_saveexec_b64 s[36:37], vcc"); A("global_store_dword v7, v66, s[88:89] sc1"); A("s_mov_b64 exec, s[36:37]")
LB("L_nostat")
for s_ in range(2):
    A(f"ds_read_b64_tr_b16 v[{104+4*s_}:{105+4*s_}], v10 offset:{s_*8192}")
    A(f"ds_read_b64_tr_b16 v[{106+4*s_}:{107+4*s_}], v10 offset:{s_*8192+1024}")
C("combine")
A("s_lshl_b32 s33, s30, 5"); A("s_add_u32 s33, s33, s20"); A("s_lshl_b32 s33, s33, 12"); A(f"s_add_u32 s33, s33, {WOB}")
A("v_lshrrev_b32 v5, 5, v2"); A("v_lshlrev_b32 v5, 6, v5")
A("v_and_b32 v6, 7, v2"); A("v_lshl_add_u32 v5, v6, 2, v5")
A("v_bfe_u32 v6, v2, 3, 2"); A("v_add_u32 v5, v5, v6"); A("v_lshlrev_b32 v5, 2, v5")
A("s_lshr_b32 s34, s22, 2"); A("s_lshl_b32 s34, s34, 10")
A("s_and_b32 s35, s22, 1"); A("s_lshl_b32 s35, s35, 9"); A("s_add_u32 s34, s34, s35")
A("s_bfe_u32 s35, s22, 0x10001"); A("s_lshl_b32 s35, s35, 7"); A("s_add_u32 s34, s34, s35")
A("s_add_u32 s34, s34, s33"); A("v_add_u32 v5, s34, v5")
A("s_lshr_b32 s34, s22, 1"); A("s_lshl_b32 s34, s34, 3"); A("s_add_u32 s34, s34, s33"); A("s_add_u32 s34, s34, 2048"); A("v_mov_b32 v6, s34")
for c in range(1, 4):
    A(f"v_add_u32 v{68+c}, {c*0x8000}, v5"); A(f"v_add_u32 v{72+c}, {c*0x8000}, v6")
A("v_mov_b32 v68, v5"); A("v_mov_b32 v72, v6")
lds_wait(12, 1)
spin_head("L_po")
for c in range(4): A(f"global_load_dword v{48+c}, v{68+c}, s[88:89] sc1")
for c in range(4): A(f"global_load_dwordx2 v[{76+2*c}:{77+2*c}], v{72+c}, s[88:89] sc1")
A("s_waitcnt vmcnt(0)")
chk_empty([48, 49, 50, 51] + list(range(76, 84)))
spin_tail("L_po", "L_po_done")
stamp(6)
A("v_max3_f32 v8, v76, v78, v80"); A("v_max_f32 v8, v8, v82")
for c in range(4):
    m = 76+2*c
    A(f"v_sub_f32 v{m}, v{m}, v8"); A(f"v_mul_f32 v{m}, 0x3fb8aa3b, v{m}"); A(f"v_exp_f32 v{m}, v{m}")
nop(1)
A("v_mul_f32 v9, v76, v77"); A("v_fmac_f32 v9, v78, v79"); A("v_fmac_f32 v9, v80, v81"); A("v_fmac_f32 v9, v82, v83")
A("v_rcp_f32 v9, v9")
A("v_mul_f32 v48, v48, v76"); A("v_fmac_f32 v48, v49, v78"); A("v_fmac_f32 v48, v50, v80"); A("v_fmac_f32 v48, v51, v82")
A("v_mul_f32 v48, v48, v9")
A("v_cvt_pk_bf16_f32 v48, v48, v48")
A(f"s_mul_i32 s33, s30, {HPITCH}"); A(f"s_add_u32 s33, s33, {LO}"); A("v_lshlrev_b32 v6, 1, v2"); A("v_add_u32 v6, s33, v6")
A("ds_write_b16 v6, v48")
A("v_and_b32 v6, 7, v3"); A(f"v_mul_u32_u24 v6, {HPITCH}, v6"); A("v_lshl_add_u32 v6, v4, 4, v6"); A(f"v_add_u32 v6, {LO}, v6")
for i in range(4): A(f"v_mov_b32 v{56+i}, 0")
A("s_lshl_b32 s33, s30, 9"); A(f"s_add_u32 s33, s33, {LORED + 16384}")
A("v_lshlrev_b32 v7, 8, v4"); A("v_lshl_add_u32 v7, v3, 2, v7"); A("v_add_u32 v7, s33, v7")
A("v_lshlrev_b32 v8, 4, v2"); A("v_add_u32 v8, s33, v8")
A("v_lshrrev_b32 v5, 2, v2"); A("v_lshlrev_b32 v5, 9, v5"); A("v_and_b32 v9, 3, v2"); A("v_lshl_add_u32 v5, v9, 4, v5")
A("s_lshl_b32 s33, s2, 12"); A("s_lshl_b32 s34, s30, 6"); A("s_add_u32 s33, s33, s34"); A(f"s_add_u32 s33, s33, {WSB}"); A("v_add_u32 v5, s33, v5")
bbar()
A("ds_read_b128 v[48:51], v6"); A("ds_read_b128 v[52:55], v6 offset:64")
A("s_waitcnt lgkmcnt(0)")
A("v_mfma_f32_16x16x32_bf16 v[56:59], v[48:51], v[104:107], v[56:59]")
A("v_mfma_f32_16x16x32_bf16 v[56:59], v[52:55], v[108:111], v[56:59]")
nop(10)
for r in range(4): guard(56+r)
A("v_cmp_gt_u32 vcc, 32, v2"); A("s_and_saveexec_b64 s[36:37], vcc")
for r in range(4): A(f"ds_write_b32 v7, v{56+r} offset:{r*64}")
A("ds_read_b128 v[60:63], v8"); A("s_waitcnt lgkmcnt(0)")
A("global_store_dwordx4 v5, v[60:63], s[88:89] sc1")
stamp(7)
if STAMPS:
    A("s_cmp_lg_u32 s30, 0"); A("s_cbranch_scc1 L_end")
    stamp_flush(256)
A("s_endpgm")

LB("L_ctrl")
C("control waves")
stamp(0)
if "--noprio" not in sys.argv: A("s_setprio 3")
A("s_sub_u32 s31, s30, 8")
A("s_cmp_lg_u32 s30, 8"); A("s_cbranch_scc1 L_n0"); A("s_cmp_lg_u32 s2, 0"); A("s_cbranch_scc1 L_n0")
A("s_memrealtime s[96:97]"); A("s_waitcnt lgkmcnt(0)"); A("s_or_b32 s96, s96, 1")
A("v_mov_b32 v12, s96"); A("v_mov_b32 v13, 0")
A("s_mov_b64 exec, 1"); A("global_store_dword v13, v12, s[86:87] sc1"); A("s_mov_b64 exec, -1")
LB("L_n0")
srd(40, 70, 0x400000); srd(48, 76, 512*1792*2)
A("v_lshrrev_b32 v5, 5, v2"); A("v_and_b32 v6, 31, v2")
A("s_lshl_b32 s32, s31, 1"); A("v_add_u32 v7, s32, v5")
A("v_lshlrev_b32 v8, 10, v7"); A("v_lshl_add_u32 v8, v6, 5, v8")
A("global_load_dwordx4 v[40:43], v8, s[64:65]"); A("global_load_dwordx4 v[44:47], v8, s[64:65] offset:16")
A("s_lshr_b32 s26, s21, 3"); A("s_and_b32 s27, s21, 7"); A("s_lshl_b32 s28, s20, 3"); A("s_add_u32 s27, s27, s28")
A("v_lshrrev_b32 v9, 3, v2"); A("v_and_b32 v10, 7, v2"); A("v_lshlrev_b32 v11, 13, v9"); A("v_lshl_add_u32 v11, v10, 4, v11")
A("s_lshl_b32 s32, s26, 7"); A("s_lshl_b32 s33, s31, 5"); A("s_add_u32 s32, s32, s33"); A("s_lshl_b32 s32, s32, 13")
A("s_lshl_b32 s33, s27, 7"); A("s_add_u32 s32, s32, s33")
A("s_lshl_b32 s34, s31, 12"); A(f"s_add_u32 s35, s34, {LWQ}")
for n in range(4):
    A(f"s_add_u32 m0, s35, {n*1024}"); A(f"s_add_u32 s33, s32, {n*8*8192}")
    A("buffer_load_dwordx4 v11, s[40:43], s33 offen nt lds")
A("s_mul_i32 s28, s20, 14"); A("s_add_u32 s28, s28, s21"); A("s_lshr_b32 s29, s28, 2"); A("s_and_b32 s28, s28, 3")
A("s_cmp_ge_u32 s21, 14"); A("s_cbranch_scc1 L_now1")
A("v_mul_u32_u24 v11, 3584, v9"); A("v_lshl_add_u32 v11, v10, 4, v11")
A("s_lshl_b32 s32, s28, 7"); A("s_lshl_b32 s33, s31, 5"); A("s_add_u32 s32, s32, s33"); A("s_mul_i32 s32, s32, 3584")
A("s_lshl_b32 s33, s29, 7"); A("s_add_u32 s32, s32, s33")
A(f"s_add_u32 s35, s34, {LW1}")
for n in range(4):
    A(f"s_add_u32 m0, s35, {n*1024}"); A(f"s_add_u32 s33, s32, {n*8*3584}")
    A("buffer_load_dwordx4 v11, s[48:51], s33 offen nt lds")
LB("L_now1")
A("v_mov_b32 v60, 0")
A("global_load_dword v61, v60, s[86:87] sc1")
for i in range(4): A(f"v_mov_b32 v{12+i}, -1")
A("v_lshlrev_b32 v16, 4, v2")
A("s_cmp_eq_u32 s31, 0"); A("s_cbranch_scc0 L_cl1")
A(f"s_lshl_b32 s32, s2, 12"); A(f"s_add_u32 s32, s32, {WOB}"); A("v_add_u32 v17, s32, v16")
A("global_store_dwordx4 v17, v[12:15], s[88:89] sc1"); A("global_store_dwordx4 v17, v[12:15], s[88:89] offset:1024 sc1")
A("s_mov_b64 exec, 0xf"); A("global_store_dwordx4 v17, v[12:15], s[88:89] offset:2048 sc1"); A("s_mov_b64 exec, -1")
A("s_branch L_cldone")
LB("L_cl1")
A("s_cmp_eq_u32 s31, 3"); A("s_cbranch_scc1 L_cl3")
A(f"s_lshl_b32 s32, s2, 12"); A("s_sub_u32 s33, s31, 1"); A("s_lshl_b32 s33, s33, 11"); A("s_add_u32 s32, s32, s33"); A(f"s_add_u32 s32, s32, {WSB}"); A("v_add_u32 v17, s32, v16")
A("global_store_dwordx4 v17, v[12:15], s[88:89] sc1"); A("global_store_dwordx4 v17, v[12:15], s[88:89] offset:1024 sc1")
A("s_branch L_cldone")
LB("L_cl3")
A(f"s_lshl_b32 s32, s2, 11"); A(f"s_add_u32 s32, s32, {WYB}"); A("v_add_u32 v17, s32, v16")
A("global_store_dwordx4 v17, v[12:15], s[88:89] sc1"); A("global_store_dwordx4 v17, v[12:15], s[88:89] offset:1024 sc1")
LB("L_cldone")
for i in range(4): A(f"v_mov_b32 v{12+i}, 0")
A("v_lshrrev_b32 v17, 5, v2"); A("s_lshl_b32 s32, s31, 1"); A("v_add_u32 v17, s32, v17"); A("v_lshlrev_b32 v17, 15, v17")
A("v_and_b32 v18, 31, v2"); A("v_lshl_add_u32 v17, v18, 4, v17")
A(f"s_lshl_b32 s32, s26, 18"); A("s_lshl_b32 s33, s27, 9"); A("s_add_u32 s32, s32, s33"); A(f"s_add_u32 s32, s32, {WQP}"); A("v_add_u32 v19, s32, v17")
A("global_store_dwordx4 v19, v[12:15], s[88:89] sc1")
A("s_cmp_ge_u32 s21, 14"); A("s_cbranch_scc1 L_pt2")
A("v_lshrrev_b32 v17, 5, v2"); A("s_lshl_b32 s32, s31, 1"); A("v_add_u32 v17, s32, v17"); A("v_mul_u32_u24 v17, 14336, v17")
A("v_lshl_add_u32 v17, v18, 4, v17")
A(f"s_mul_i32 s32, s28, {8*14336}"); A("s_lshl_b32 s33, s29, 9"); A("s_add_u32 s32, s32, s33"); A(f"s_add_u32 s32, s32, {WHP}"); A("v_add_u32 v19, s32, v17")
A("global_store_dwordx4 v19, v[12:15], s[88:89] sc1")
LB("L_pt2")
A("s_cmp_lg_u32 s31, 0"); A("s_cbranch_scc1 L_n1")
A("ds_write_b128 v125, v[12:15]"); A("ds_write_b128 v125, v[12:15] offset:16")
LB("L_n1")
A("s_waitcnt lgkmcnt(0)")
A("s_barrier")
C("LN")
A("s_waitcnt vmcnt(0)")
stamp(1)
if "--bulkonly" in sys.argv:
    A("s_cmp_lg_u32 s31, 0"); A("s_cbranch_scc1 L_end"); stamp_flush(0); A("s_endpgm")
for i in range(8):
    A(f"v_lshlrev_b32 v{16+2*i}, 16, v{40+i}"); A(f"v_and_b32 v{17+2*i}, 0xffff0000, v{40+i}")
A("v_add_f32 v32, v16, v17")
for i in range(2, 16): A(f"v_add_f32 v32, v32, v{16+i}")
allred32(32, 33)
A("v_mul_f32 v32, 0x3b000000, v32")
A("v_sub_f32 v34, v16, v32"); A("v_mul_f32 v33, v34, v34")
for i in range(1, 16):
    A(f"v_sub_f32 v34, v{16+i}, v32"); A("v_fmac_f32 v33, v34, v34")
allred32(33, 34)
A("v_mul_f32 v33, 0x3b000000, v33")
rnd1(32); rnd1(33)
A("v_add_f32 v33, 0x3727c5ac, v33"); rnd1(33)
A("v_sqrt_f32 v33, v33"); nop(1); rnd1(33)
A("v_rcp_f32 v33, v33"); nop(1)
for i in range(0, 16, 2):
    a, b = 16+i, 17+i
    A(f"v_sub_f32 v{a}, v{a}, v32"); A(f"v_sub_f32 v{b}, v{b}, v32")
    A(f"v_cvt_pk_bf16_f32 v34, v{a}, v{b}")
    A(f"v_lshlrev_b32 v{a}, 16, v34"); A(f"v_and_b32 v{b}, 0xffff0000, v34")
    A(f"v_mul_f32 v{a}, v{a}, v33"); A(f"v_mul_f32 v{b}, v{b}, v33")
    A(f"v_cvt_pk_bf16_f32 v{40+i//2}, v{a}, v{b}")
A(f"v_mul_u32_u24 v8, {XNP}, v7"); A("v_lshl_add_u32 v8, v6, 5, v8"); A(f"v_add_u32 v8, {LXN}, v8")
A("ds_write_b128 v8, v[40:43]"); A("ds_write_b128 v8, v[44:47] offset:16")
A("v_mov_b32 v13, 0"); A("v_mov_b32 v12, v61")
A("v_cmp_ne_u32 vcc, 0, v12"); A("s_cbranch_vccnz L_pn_done")
spin_head("L_pn")
A("global_load_dword v12, v13, s[86:87] sc1"); A("s_waitcnt vmcnt(0)")
A("v_cmp_eq_u32 vcc, 0, v12")
spin_tail("L_pn", "L_pn_done", sleep=1)
A("v_readfirstlane_b32 s95, v12")
cbar()
A("s_cmp_lg_u32 s31, 3"); A("s_cbranch_scc1 L_nf")
A("v_mov_b32 v12, 1"); A("v_mov_b32 v13, s95"); A(f"s_lshl_b32 s32, s2, 3"); A(f"s_add_u32 s32, s32, {WFL}"); A("v_mov_b32 v14, s32")
A("s_mov_b64 exec, 1"); A("global_store_dwordx2 v14, v[12:13], s[88:89] sc1"); A("s_mov_b64 exec, -1")
LB("L_nf")
stamp(2)
C("jobs")
def job(lw, skg, wsbase, rowpitch, scg):
    A("v_and_b32 v5, 7, v3"); A(f"v_mul_u32_u24 v5, {XNP}, v5"); A("v_lshl_add_u32 v5, v4, 4, v5")
    A(f"s_lshl_b32 s32, s{skg}, 8"); A(f"s_add_u32 s32, s32, {LXN}"); A("v_add_u32 v5, s32, v5")
    for s in range(4): A(f"ds_read_b128 v[{16+4*s}:{19+4*s}], v5 offset:{s*64}")
    A("v_lshrrev_b32 v6, 2, v3"); A("v_lshl_add_u32 v6, v4, 3, v6"); A("v_lshlrev_b32 v6, 7, v6")
    A("v_and_b32 v7, 3, v3"); A("v_lshl_add_u32 v6, v7, 3, v6")
    A("s_lshl_b32 s32, s31, 5"); A(f"s_add_u32 s32, s32, {lw}"); A("v_add_u32 v6, s32, v6")
    for s in range(4):
        A(f"ds_read_b64_tr_b16 v[{32+4*s}:{33+4*s}], v6 offset:{s*4096}")
        A(f"ds_read_b64_tr_b16 v[{34+4*s}:{35+4*s}], v6 offset:{s*4096+512}")
    for i in range(4): A(f"v_mov_b32 v{48+i}, 0")
    for r in range(4): A(f"v_mov_b32 v{53+2*r}, s95")
    A(f"v_mul_u32_u24 v7, {4*rowpitch}, v4"); A("v_lshl_add_u32 v7, v3, 3, v7")
    A(f"s_mul_i32 s32, s{skg}, {8*rowpitch}"); A(f"s_lshl_b32 s33, s{scg}, 9"); A("s_add_u32 s32, s32, s33"); A("s_lshl_b32 s33, s31, 7"); A("s_add_u32 s32, s32, s33")
    A(f"s_add_u32 s32, s32, {wsbase}"); A("v_add_u32 v7, s32, v7")
    A("s_waitcnt lgkmcnt(0)")
    for s in range(4):
        A(f"v_mfma_f32_16x16x32_bf16 v[48:51], v[{16+4*s}:{19+4*s}], v[{32+4*s}:{35+4*s}], v[48:51]")
    nop(10)
    for r in range(4): A(f"v_mov_b32 v{52+2*r}, v{48+r}")
    A("v_cmp_gt_u32 vcc, 32, v2"); A("s_and_saveexec_b64 s[36:37], vcc")
    for r in range(4):
        A(f"v_add_u32 v8, {r*rowpitch}, v7"); A(f"global_store_dwordx2 v8, v[{52+2*r}:{53+2*r}], s[88:89] sc1")
    A("s_mov_b64 exec, s[36:37]")
job(LWQ, 26, WQP, 32768, 27)
A("s_cmp_ge_u32 s21, 14"); A("s_cbranch_scc1 L_noh")
job(LW1, 28, WHP, 14336, 29)
LB("L_noh")
stamp(3)
A("s_cmp_ge_u32 s31, 2"); A("s_cbranch_scc1 L_sph")
C("q gather (waves 0,1): sentinel then full")
A("v_and_b32 v5, 31, v2"); A("v_lshrrev_b32 v6, 3, v5"); A("v_and_b32 v7, 7, v5")
A("v_lshlrev_b32 v6, 18, v6"); A("v_lshl_add_u32 v6, v7, 9, v6")
A(f"s_lshl_b32 s32, s22, 15"); A("s_lshl_b32 s33, s20, 12"); A("s_add_u32 s32, s32, s33"); A(f"s_add_u32 s32, s32, {WQP}")
A("s_lshl_b32 s33, s31, 8"); A("s_add_u32 s33, s33, s32"); A("s_add_u32 s33, s33, 248"); A("v_add_u32 v6, s33, v6")
spin_head("L_sq")
A("global_load_dwordx2 v[16:17], v6, s[88:89] sc1"); A("s_waitcnt vmcnt(0)")
A("v_cmp_ne_u32 vcc, s95, v17")
spin_tail("L_sq", "L_sq_done", sleep=2)
A("s_lshl_b32 s33, s31, 6"); A("v_add_u32 v5, s33, v2")
A("v_lshlrev_b32 v6, 5, v5"); A("v_add_u32 v6, s32, v6")
for kg in range(1, 4): A(f"v_add_u32 v{8+kg}, {kg*262144}, v6")
A("v_mov_b32 v8, v6")
spin_head("L_pq")
for kg in range(4):
    A(f"global_load_dwordx4 v[{16+8*kg}:{19+8*kg}], v{8+kg}, s[88:89] sc1")
    A(f"global_load_dwordx4 v[{20+8*kg}:{23+8*kg}], v{8+kg}, s[88:89] offset:16 sc1")
A("s_waitcnt vmcnt(0)")
chk_tags([17+2*i for i in range(16)])
spin_tail("L_pq", "L_pq_done", sleep=2)
for i in range(4):
    A(f"v_add_f32 v{16+2*i}, v{16+2*i}, v{24+2*i}"); A(f"v_add_f32 v{32+2*i}, v{32+2*i}, v{40+2*i}"); A(f"v_add_f32 v{16+2*i}, v{16+2*i}, v{32+2*i}")
A("v_cvt_pk_bf16_f32 v24, v16, v18"); A("v_cvt_pk_bf16_f32 v25, v20, v22")
A("v_lshlrev_b32 v6, 3, v5"); A(f"v_add_u32 v6, {LQ}, v6"); A("ds_write_b64 v6, v[24:25]")
lds_inc(24)
LB("L_sph")
stamp(4)
lds_wait(24, 2)
stamp(5)
C("S phase: control wave cw handles keys [64cw, +64) = bulk chunks w = 2cw, 2cw+1 ; tiles tt=0..3 (w = 2cw + (tt>>1), t = tt&1)")
lds_wait(16, 8)
stamp(6)
A("v_and_b32 v5, 3, v3"); A("v_lshlrev_b32 v5, 2, v5"); A("v_lshrrev_b32 v6, 2, v3"); A("v_or_b32 v5, v5, v6")
A("v_lshlrev_b32 v6, 8, v5"); A("s_lshl_b32 s32, s31, 14"); A("v_add_u32 v6, s32, v6")
for s in range(4):
    A(f"v_add_u32 v7, {4*s}, v4"); A("v_xor_b32 v7, v7, v5"); A(f"v_lshl_add_u32 v{8+s}, v7, 4, v6")
for tt in range(4):
    for s in range(4):
        A(f"ds_read_b128 v[{16+16*tt+4*s}:{19+16*tt+4*s}], v{8+s} offset:{tt*4096}")
A("v_and_b32 v7, 3, v3"); A("v_lshlrev_b32 v7, 8, v7"); A(f"v_lshl_add_u32 v7, v4, 4, v7"); A(f"v_add_u32 v7, {LQ}, v7")
for s in range(4): A(f"ds_read_b128 v[{80+4*s}:{83+4*s}], v7 offset:{s*64}")
for i in range(16): A(f"v_mov_b32 v{96+i}, 0")
A("s_waitcnt lgkmcnt(0)")
for s in range(4):
    for tt in range(4):
        a = 96 + 4*tt
        A(f"v_mfma_f32_16x16x32_bf16 v[{a}:{a+3}], v[{16+16*tt+4*s}:{19+16*tt+4*s}], v[{80+4*s}:{83+4*s}], v[{a}:{a+3}]")
nop(10)
A("s_mov_b32 s34, 0x3db504f3")
for i in range(0, 16, 2):
    a, b = 96+i, 97+i
    A(f"v_cvt_pk_bf16_f32 v8, v{a}, v{b}")
    A(f"v_lshlrev_b32 v{a}, 16, v8"); A(f"v_and_b32 v{b}, 0xffff0000, v8")
    A(f"v_mul_f32 v{a}, s34, v{a}"); A(f"v_mul_f32 v{b}, s34, v{b}")
    A(f"v_cvt_pk_bf16_f32 v8, v{a}, v{b}")
    A(f"v_lshlrev_b32 v{a}, 16, v8"); A(f"v_and_b32 v{b}, 0xffff0000, v8")
A("v_max3_f32 v112, v96, v97, v98")
for i in range(99, 111, 2): A(f"v_max3_f32 v112, v112, v{i}, v{i+1}")
A("v_max_f32 v112, v112, v111")
red_g(112, 8, "v_max_f32")
A("v_and_b32 v7, 3, v3"); A("v_lshlrev_b32 v7, 4, v7")
A("s_lshl_b32 s33, s31, 2"); A(f"s_add_u32 s33, s33, {LMX}"); A("v_add_u32 v9, s33, v7")
A("ds_write_b32 v9, v112")
cbar()
A(f"v_add_u32 v9, {LMX}, v7"); A("ds_read_b128 v[16:19], v9"); A("s_waitcnt lgkmcnt(0)")
A("v_max3_f32 v112, v16, v17, v18"); A("v_max_f32 v112, v112, v19")
A("s_mov_b32 s34, 0x3fb8aa3b")
for i in range(16):
    a = 96 + i
    A(f"v_sub_f32 v{a}, v{a}, v112"); A(f"v_mul_f32 v{a}, s34, v{a}"); A(f"v_exp_f32 v{a}, v{a}")
nop(1)
A("v_add_f32 v113, v96, v97")
for i in range(98, 112): A(f"v_add_f32 v113, v113, v{i}")
red_g(113, 8, "v_add_f32")
A("s_lshl_b32 s33, s31, 2"); A(f"s_add_u32 s33, s33, {LLS}"); A("v_add_u32 v9, s33, v7")
A("ds_write_b32 v9, v113")
for i in range(16): A(f"v_cvt_pk_bf16_f32 v{96+i}, v{96+i}, v{96+i}")
A("v_and_b32 v7, 3, v3"); A("v_lshlrev_b32 v7, 7, v7"); A("v_lshl_add_u32 v7, v4, 5, v7")
A("s_lshl_b32 s33, s31, 10"); A(f"s_add_u32 s33, s33, {LP}"); A("v_add_u32 v7, s33, v7")
A("v_cmp_gt_u32 vcc, 4, v3"); A("s_and_saveexec_b64 s[36:37], vcc")
for tt in range(4):
    A(f"ds_write_b128 v7, v[{96+4*tt}:{99+4*tt}] offset:{(tt>>1)*512 + (tt&1)*16}")
A("s_mov_b64 exec, s[36:37]")
lds_inc(20)
stamp(7)
A("s_cmp_lt_u32 s31, 2"); A("s_cbranch_scc1 L_nohg")
LB("L_hg")
C("h gather (waves 2,3)")
A("v_and_b32 v5, 3, v2"); A("v_mul_u32_u24 v5, 114688, v5"); A("v_bfe_u32 v6, v2, 2, 1"); A("v_mul_u32_u24 v6, 440, v6"); A("v_add_u32 v5, v5, v6")
A("s_mul_i32 s32, s21, 448"); A(f"s_add_u32 s32, s32, {WHP + 7*14336}"); A("v_add_u32 v5, s32, v5")
spin_head("L_sh")
A("global_load_dwordx2 v[16:17], v5, s[88:89] sc1"); A("s_waitcnt vmcnt(0)")
A("v_cmp_ne_u32 vcc, s95, v17")
spin_tail("L_sh", "L_sh_done", sleep=2)
A("s_sub_u32 s32, s31, 2"); A("s_lshl_b32 s32, s32, 6"); A("v_add_u32 v5, s32, v2")
A("v_lshrrev_b32 v6, 4, v5"); A("v_and_b32 v7, 15, v5")
A("v_min_u32 v8, 13, v7")
A("v_mul_u32_u24 v9, 14336, v6"); A("v_lshl_add_u32 v9, v8, 5, v9")
A("s_mul_i32 s32, s21, 448"); A(f"s_add_u32 s32, s32, {WHP}"); A("v_add_u32 v9, s32, v9")
A("s_mul_i32 s32, s21, 112"); A("v_lshlrev_b32 v10, 3, v8"); A("v_add_u32 v10, s32, v10")
A("global_load_dwordx2 v[52:53], v10, s[78:79]")
for kg in range(4): A(f"v_add_u32 v{10+kg}, {kg*8*14336}, v9")
spin_head("L_ph")
for kg in range(4):
    A(f"global_load_dwordx4 v[{16+8*kg}:{19+8*kg}], v{10+kg}, s[88:89] sc1")
    A(f"global_load_dwordx4 v[{20+8*kg}:{23+8*kg}], v{10+kg}, s[88:89] offset:16 sc1")
A("s_waitcnt vmcnt(0)")
chk_tags([17+2*i for i in range(16)])
spin_tail("L_ph", "L_ph_done", sleep=2)
for i in range(4):
    A(f"v_add_f32 v{16+2*i}, v{16+2*i}, v{24+2*i}"); A(f"v_add_f32 v{32+2*i}, v{32+2*i}, v{40+2*i}"); A(f"v_add_f32 v{16+i}, v{16+2*i}, v{32+2*i}")
    rnd1(16+i)
A("v_lshlrev_b32 v20, 16, v52"); A("v_and_b32 v21, 0xffff0000, v52"); A("v_lshlrev_b32 v22, 16, v53"); A("v_and_b32 v23, 0xffff0000, v53")
A("s_mov_b32 s32, 0x3d372713"); A("s_mov_b32 s33, 0x40135761")
for i in range(4):
    x = 16+i
    A(f"v_add_f32 v{x}, v{x}, v{20+i}"); rnd1(x)
    A(f"v_mul_f32 v24, v{x}, v{x}"); A(f"v_mul_f32 v24, s32, v24"); A(f"v_fma_f32 v24, v24, v{x}, v{x}")
    A(f"v_mul_f32 v24, s33, v24"); A("v_exp_f32 v24, v24"); nop(1)
    A("v_add_f32 v24, 1.0, v24"); A("v_rcp_f32 v24, v24"); nop(1)
    A("v_fma_f32 v24, v24, -2.0, 1.0")
    A("v_add_f32 v24, 1.0, v24"); A(f"v_mul_f32 v24, v24, v{x}"); A(f"v_mul_f32 v{x}, 0.5, v24")
A("v_cvt_pk_bf16_f32 v20, v16, v17"); A("v_cvt_pk_bf16_f32 v21, v18, v19")
A("v_cmp_gt_u32 vcc, 14, v7"); nop(2); A("v_cndmask_b32 v20, 0, v20, vcc"); A("v_cndmask_b32 v21, 0, v21, vcc")
A(f"v_mul_u32_u24 v9, {HPITCH}, v6"); A("v_lshl_add_u32 v9, v7, 3, v9"); A(f"v_add_u32 v9, {LH}, v9")
A("ds_write_b64 v9, v[20:21]")
lds_inc(28)
LB("L_nohg")
C("wave 1: flags")
A("s_cmp_lg_u32 s31, 1"); A("s_cbranch_scc1 L_nfl")
A(f"v_lshlrev_b32 v7, 5, v2"); A(f"v_add_u32 v7, {WFL}, v7")
spin_head("L_pfl")
A("global_load_dwordx4 v[16:19], v7, s[88:89] sc1"); A("global_load_dwordx4 v[20:23], v7, s[88:89] offset:16 sc1"); A("s_waitcnt vmcnt(0)")
chk_tags([17, 19, 21, 23])
spin_tail("L_pfl", "L_pfl_done", sleep=2)
A("v_mov_b32 v16, 1"); A("ds_write_b32 v125, v16 offset:12")
LB("L_nfl")
C("FFN2 (W2 landed: K-landed counter covers ops 0..8)")
lds_wait(28, 2)
A("v_and_b32 v5, 7, v3"); A(f"v_mul_u32_u24 v5, {HPITCH}, v5"); A("v_lshl_add_u32 v5, v4, 4, v5"); A(f"v_add_u32 v5, {LH}, v5")
A("ds_read_b128 v[16:19], v5"); A("ds_read_b128 v[20:23], v5 offset:64")
A("v_lshrrev_b32 v6, 2, v3"); A("v_lshl_add_u32 v6, v4, 3, v6"); A("v_lshlrev_b32 v6, 7, v6")
A("v_and_b32 v7, 3, v3"); A("v_lshl_add_u32 v6, v7, 3, v6")
A("s_lshl_b32 s32, s31, 5"); A(f"s_add_u32 s32, s32, {LW2}"); A("v_add_u32 v6, s32, v6")
for s in range(2):
    A(f"ds_read_b64_tr_b16 v[{32+4*s}:{33+4*s}], v6 offset:{s*4096}")
    A(f"ds_read_b64_tr_b16 v[{34+4*s}:{35+4*s}], v6 offset:{s*4096+512}")
for i in range(4): A(f"v_mov_b32 v{48+i}, 0")
A("v_lshlrev_b32 v7, 10, v4"); A("v_lshl_add_u32 v7, v3, 2, v7")
A("s_lshl_b32 s32, s2, 11"); A("s_lshl_b32 s33, s31, 6"); A("s_add_u32 s32, s32, s33"); A(f"s_add_u32 s32, s32, {WYB}"); A("v_add_u32 v7, s32, v7")
A("s_waitcnt lgkmcnt(0)")
A("v_mfma_f32_16x16x32_bf16 v[48:51], v[16:19], v[32:35], v[48:51]")
A("v_mfma_f32_16x16x32_bf16 v[48:51], v[20:23], v[36:39], v[48:51]")
nop(10)
for r in range(4): guard(48+r)
A("v_cmp_gt_u32 vcc, 32, v2"); A("s_and_saveexec_b64 s[36:37], vcc")
for r in range(4): A(f"global_store_dword v7, v{48+r}, s[88:89] offset:{r*256} sc1")
A("s_mov_b64 exec, s[36:37]")
A("s_cmp_lg_u32 s31, 0"); A("s_cbranch_scc1 L_end")
C("wave 0: y -> g, then final")
lds_wait(12, 1)
A("v_lshrrev_b32 v5, 2, v2"); A("v_and_b32 v6, 3, v2")
A("v_lshlrev_b32 v7, 14, v5"); A("v_lshl_add_u32 v7, v6, 4, v7")
A("s_lshl_b32 s32, s20, 11"); A("s_lshl_b32 s33, s22, 8"); A("s_add_u32 s32, s32, s33"); A("s_lshl_b32 s33, s23, 6"); A("s_add_u32 s32, s32, s33"); A(f"s_add_u32 s32, s32, {WYB}")
A("v_add_u32 v7, s32, v7"); A("v_add_u32 v8, 0x40000, v7")
A("s_lshl_b32 s32, s20, 7"); A("s_lshl_b32 s33, s23, 5"); A("s_add_u32 s32, s32, s33"); A("v_lshlrev_b32 v9, 3, v6"); A("v_add_u32 v9, s32, v9")
A("global_load_dwordx2 v[100:101], v9, s[82:83]")
A("s_lshl_b32 s33, s22, 10"); A("v_add_u32 v10, s33, v9")
A("global_load_dwordx2 v[102:103], v10, s[64:65]")
def red16(regs):
    for r in regs: dpp_add(r, "row_shr:4")
    for r in regs: dpp_add(r, "row_shr:8")
    for r in regs: red_g(r, 11, "v_add_f32")
spin_head("L_py")
A("global_load_dwordx4 v[16:19], v7, s[88:89] sc1"); A("global_load_dwordx4 v[20:23], v8, s[88:89] sc1"); A("s_waitcnt vmcnt(0)")
chk_empty(list(range(16, 24)))
spin_tail("L_py", "L_py_done", sleep=2)
stamp(8)
for i in range(4): A(f"v_add_f32 v{104+i}, v{16+i}, v{20+i}")
red16([104, 105, 106, 107])
A("v_lshlrev_b32 v20, 16, v100"); A("v_and_b32 v21, 0xffff0000, v100"); A("v_lshlrev_b32 v22, 16, v101"); A("v_and_b32 v23, 0xffff0000, v101")
for i in range(4):
    x = 104+i
    rnd1(x); A(f"v_add_f32 v{x}, v{x}, v{20+i}"); rnd1(x)
    A(f"v_mul_f32 v24, 0xbfb8aa3b, v{x}"); A("v_exp_f32 v24, v24"); nop(1); A("v_add_f32 v24, 1.0, v24"); A("v_rcp_f32 v24, v24"); nop(1)
    A(f"v_mul_f32 v{x}, v{x}, v24"); rnd1(x)
A("v_and_b32 v7, 7, v5"); A("v_lshrrev_b32 v8, 3, v5"); A("v_lshl_add_u32 v7, v8, 5, v7")
A("v_lshlrev_b32 v7, 12, v7"); A("v_lshl_add_u32 v7, v6, 4, v7")
A("s_lshr_b32 s32, s20, 1"); A("s_lshl_b32 s32, s32, 15")
A("s_lshl_b32 s33, s22, 9"); A("s_add_u32 s32, s32, s33")
A("s_and_b32 s33, s20, 1"); A("s_lshl_b32 s33, s33, 2"); A("s_add_u32 s33, s33, s23"); A("s_lshl_b32 s33, s33, 6"); A("s_add_u32 s32, s32, s33")
A(f"s_add_u32 s32, s32, {WSB}"); A("v_add_u32 v108, s32, v7")
for i in range(1, 4): A(f"v_add_u32 v{108+i}, {i*64*4096}, v108")
stamp(9)
spin_head("L_pz")
for i in range(4): A(f"global_load_dwordx4 v[{16+4*i}:{19+4*i}], v{108+i}, s[88:89] sc1")
A("s_waitcnt vmcnt(0)")
chk_empty(list(range(16, 32)))
spin_tail("L_pz", "L_pz_done", sleep=(0 if "--nosl" in sys.argv else 1))
stamp(11)
for i in range(4):
    A(f"v_add_f32 v{16+i}, v{16+i}, v{20+i}"); A(f"v_add_f32 v{24+i}, v{24+i}, v{28+i}"); A(f"v_add_f32 v{112+i}, v{16+i}, v{24+i}")
red16([112, 113, 114, 115])
A("v_lshlrev_b32 v20, 16, v102"); A("v_and_b32 v21, 0xffff0000, v102"); A("v_lshlrev_b32 v22, 16, v103"); A("v_and_b32 v23, 0xffff0000, v103")
for i in range(4):
    x = 112+i
    rnd1(x); A(f"v_mul_f32 v{x}, v{x}, v{104+i}"); rnd1(x); A(f"v_add_f32 v{x}, v{x}, v{20+i}")
A("v_cvt_pk_bf16_f32 v28, v112, v113"); A("v_cvt_pk_bf16_f32 v29, v114, v115")
A("v_cmp_le_u32 vcc, 12, v2"); A("v_cmp_gt_u32 s[36:37], 16, v2"); A("s_and_b64 vcc, vcc, s[36:37]"); A("s_and_saveexec_b64 s[36:37], vcc")
A("global_store_dwordx2 v10, v[28:29], s[84:85]")
stamp(12)
stamp_flush(0)
LB("L_end")
A("s_endpgm")
L.append('.section .rodata,"a"')
L.append(".p2align 6")
L.append(f".amdhsa_kernel {NAME}_kernel")
L.append("  .amdhsa_next_free_vgpr 128"); L.append("  .amdhsa_next_free_sgpr 102"); L.append("  .amdhsa_accum_offset 128")
L.append("  .amdhsa_group_segment_fixed_size 0"); L.append("  .amdhsa_kernarg_size 104"); L.append("  .amdhsa_user_sgpr_count 2")
L.append("  .amdhsa_user_sgpr_kernarg_segment_ptr 1"); L.append("  .amdhsa_system_sgpr_workgroup_id_x 1")
L.append(".end_amdhsa_kernel")
out = [x for x in L if x is not None]
dst = [a for a in sys.argv[1:] if not a.startswith("--")]
open(dst[0] if dst else f"cdna_kernels/{NAME}.s", "w").write("\n".join(out) + "\n")
```
